```python
import torch

def _softmax(x, axis=-1):
    return torch.softmax(x, dim=axis)
def _gelu(x):
    return torch.nn.functional.gelu(x, approximate="tanh")
def _silu(x):
    return torch.nn.functional.silu(x)
def _sigmoid(x):
    return torch.sigmoid(x)
def _layernorm(x, axis=-1, eps=1e-5):
    m = x.mean(dim=axis, keepdim=True)
    v = x.var(dim=axis, keepdim=True, unbiased=False)
    return (x - m) / torch.sqrt(v + eps)
def _scatter_add(tgt, idx, src, axis=0):
    return tgt.clone().index_add_(axis, idx, src)
def _segment_sum(src, seg, n):
    out = torch.zeros((n,) + src.shape[1:], dtype=src.dtype)
    return out.index_add_(0, seg, src)
def _pad(x, pw):
    flat = tuple(v for pair in reversed(pw) for v in pair)
    return torch.nn.functional.pad(x, flat)

kernel_name = 'gated_mix__sliding_block_cached__glu_gated_bilinear__decode'

def setup_inputs():

    _w = (lambda a: (lambda t: t.to(torch.bfloat16) if t.is_floating_point() else t)(torch.as_tensor(a)))
    def _A_setup():
        B, Sq, D = 2, 1, 512
        Hq, Hkv, Sk, Dh = 32, 32, 4096, 128
        assert Hq % Hkv == 0, (Hq, Hkv)
        return {
            "x": _w((lambda *s: torch.randn(*s, dtype=torch.bfloat16) * 0.05)(B, Sq, D)),
            "k_cache": _w((lambda *s: torch.randn(*s, dtype=torch.bfloat16) * 6.4)(B, Hkv, Sk, Dh)),
            "v_cache": _w((lambda *s: torch.randn(*s, dtype=torch.bfloat16) * 0.05)(B, Hkv, Sk, Dh)),
            "wq": _w((lambda *s: torch.randn(*s, dtype=torch.bfloat16) * 6.4)(D, Hq * Dh) * (D ** -0.5)),
            "wo": _w((lambda *s: torch.randn(*s, dtype=torch.bfloat16) * 0.05)(Hq * Dh, D) * ((Hq * Dh) ** -0.5)),
        }
    _A_in = _A_setup()

    def _B_setup():
        B, S, D, F = 2, 1, 512, 1376
        return {
            "x": _w((lambda *s: torch.randn(*s, dtype=torch.bfloat16) * 0.05)(B, S, D)),
            "w_gate": _w((lambda *s: torch.randn(*s, dtype=torch.bfloat16) * 0.4)(D, F) * (D ** -0.5)),
            "w_up": _w((lambda *s: torch.randn(*s, dtype=torch.bfloat16) * 0.4)(D, F) * (D ** -0.5)),
            "w_down": _w((lambda *s: torch.randn(*s, dtype=torch.bfloat16) * 0.4)(F, D) * (F ** -0.5)),
        }
    _B_in = _B_setup()

    return {
        "A_x": _A_in["x"],
        "A_k_cache": _A_in["k_cache"],
        "A_v_cache": _A_in["v_cache"],
        "A_wq": _A_in["wq"],
        "A_wo": _A_in["wo"],
        "B_x": _B_in["x"],
        "B_w_gate": _B_in["w_gate"],
        "B_w_up": _B_in["w_up"],
        "B_w_down": _B_in["w_down"],
        "gate_w": _w((lambda *s: torch.randn(*s, dtype=torch.bfloat16) * 0.05)(512) * 16.0),
    }

def reference(A_x, A_k_cache, A_v_cache, A_wq, A_wo, B_x, B_w_gate, B_w_up, B_w_down, gate_w):
    def _A_ref(x, k_cache, v_cache, wq, wo):
        B, Sq, D = x.shape
        Hq, Dh = 32, 128
        Hkv, Sk = k_cache.shape[1], k_cache.shape[2]
        W = min(4096, max(256, Sk // 4))
        rep = Hq // Hkv
        q = (lambda x, *d: x.permute(*d))((x @ wq).reshape(B, Sq, Hq, Dh), 0, 2, 1, 3)
        k = (lambda x, n, axis: torch.repeat_interleave(x, n, dim=axis))(k_cache[:, :, Sk - W:, :], rep, axis=1)
        v = (lambda x, n, axis: torch.repeat_interleave(x, n, dim=axis))(v_cache[:, :, Sk - W:, :], rep, axis=1)
        scores = torch.einsum("bhqd,bhkd->bhqk", q, k) * (Dh ** -0.5)
        p = _softmax(scores, axis=-1)
        o = torch.einsum("bhqk,bhkd->bhqd", p, v)
        return (lambda x, *d: x.permute(*d))(o, 0, 2, 1, 3).reshape(B, Sq, Hq * Dh) @ wo

    def _B_ref(x, w_gate, w_up, w_down):
        g = torch.einsum("bsd,df->bsf", x, w_gate)
        u = torch.einsum("bsd,df->bsf", x, w_up)
        h = g * u
        return torch.einsum("bsf,fd->bsd", h, w_down)

    x = A_x
    g = _sigmoid((x * gate_w).sum(-1, keepdims=True))
    a = _A_ref(x, A_k_cache, A_v_cache, A_wq, A_wo)
    b = _B_ref(x, B_w_gate, B_w_up, B_w_down)
    return g * a + (1 - g) * b
```

```python
NAME = 'gated_mix__sliding_block_cached__glu_gated_bilinear__decode'
HEADER = open('cdna_kernels/' + NAME + '.s.ref').read().split('; Override launch')[0]

class Asm:
    def __init__(self):
        self.l = []
        self.nlabel = 0
    def __call__(self, s):
        for line in s.strip('\n').split('\n'):
            self.l.append('    ' + line.strip() if not line.strip().endswith(':') else line.strip())
    def label(self, base='L'):
        self.nlabel += 1
        return f'{base}_{self.nlabel}'
    def text(self):
        return '\n'.join(self.l) + '\n'

def kernel_file(launches, kernels):
    out = HEADER
    if len(launches) == 1 and launches[0][0] == NAME + '_kernel':
        k, g, b, lds = launches[0]
        out += f'; @launch grid=({g},1,1) block=({b},1,1) lds={lds}\n'
    else:
        for k, g, b, lds in launches:
            out += f'; @launch kernel={k} grid=({g},1,1) block=({b},1,1) lds={lds}\n'
    out += '.amdgcn_target "amdgcn-amd-amdhsa--gfx950"\n.text\n'
    for k, body, vg, sg, acc in kernels:
        out += f'.globl {k}\n.p2align 8\n.type {k},@function\n{k}:\n{body}    s_endpgm\n'
    out += '.section .rodata,"a"\n'
    for k, body, vg, sg, acc in kernels:
        out += f'''.p2align 6
.amdhsa_kernel {k}
  .amdhsa_next_free_vgpr {vg}
  .amdhsa_next_free_sgpr {sg}
  .amdhsa_accum_offset {acc}
  .amdhsa_group_segment_fixed_size 0
  .amdhsa_kernarg_size 104
  .amdhsa_user_sgpr_count 2
  .amdhsa_user_sgpr_kernarg_segment_ptr 1
  .amdhsa_system_sgpr_workgroup_id_x 1
  .amdhsa_float_denorm_mode_32 3
.end_amdhsa_kernel
'''
    return out
```

```python
import sys, argparse
from asmlib import *

WS_EPOCH = 0
WS_QP = 0x1000
WS_GU = 0x80000
WS_OP = 0xC0000
WS_FP = 0x100000
WS_SIZE = 0x200000
STAMP_OFF = 128 << 20
L_QFLAG = 0
L_VDONE = 4
L_SCNT = 8
L_Q = 64
L_H = 320
L_ST = 448
L_O = 512
LDS_BYTES = 512 + 2048

SCALE = 0x3DB504F3
LOG2E = 0x3FB8AA3B
DPPALL = 'row_mask:0xf bank_mask:0xf'

def gen(fname, stamps=False, win1=6, nv_win=6, ntflag='nt', LIM_LDS=400000, LIM_G=40000, spoll=True):
    a = Asm()
    st_idx = {}
    def stamp(i):
        if stamps:
            a(f's_memrealtime s[{80+2*i}:{81+2*i}]')
    def srd(base, ptr, size):
        a(f'''s_mov_b32 s{base}, s{ptr}
        s_mov_b32 s{base+1}, s{ptr+1}
        s_mov_b32 s{base+2}, {size}
        s_mov_b32 s{base+3}, 0x20000''')
    def finish(nst):
        if stamps:
            a('s_mov_b64 exec, -1')
            a('s_waitcnt lgkmcnt(0)')
            srd(76, 56, 0x10000000)
            a(f'''s_mul_i32 s10, s2, 6
            s_add_u32 s10, s10, s3
            s_lshl_b32 s10, s10, 6
            s_add_u32 s10, s10, {STAMP_OFF}
            v_mov_b32 v1, 0''')
            for i in range(8):
                if i < nst:
                    a(f'''v_mov_b32 v2, s{80+2*i}
                    v_mov_b32 v3, s{81+2*i}''')
                a(f'''buffer_store_dwordx2 v[2:3], v1, s[76:79], s10 offen offset:{i*8}
                s_nop 1''')
        a('s_endpgm')
    def lds_poll(off, target, vtmp, vz):
        L = a.label('Lp'); D = a.label('Lpd')
        a(f's_mov_b32 s11, {LIM_LDS}')
        a(f'{L}:')
        a(f'''ds_read_b32 v{vtmp}, v{vz} offset:{off}
        s_waitcnt lgkmcnt(0)
        v_readfirstlane_b32 s10, v{vtmp}
        s_cmp_ge_u32 s10, {target}
        s_cbranch_scc1 {D}
        s_sub_u32 s11, s11, 1
        s_cmp_lg_u32 s11, 0
        s_cbranch_scc1 {L}''')
        a(f'{D}:')
    def tag_compute():
        a('''s_mul_i32 s7, s6, 0x9E3779B1
        s_add_u32 s7, s7, 0x7F4A7C15
        s_lshr_b32 s8, s7, 15
        s_xor_b32 s7, s7, s8
        s_mul_i32 s7, s7, 0x85EBCA6B
        s_lshr_b32 s8, s7, 13
        s_xor_b32 s7, s7, s8''')
    def tag_regs(vT, vFF, vC):
        a(f'''v_mov_b32 v{vT}, s7
        v_lshrrev_b32 v{vT+1}, 8, v{vT}
        v_lshrrev_b32 v{vT+2}, 16, v{vT}
        v_lshrrev_b32 v{vT+3}, 24, v{vT}
        v_mov_b32 v{vFF}, 0xff
        v_mov_b32 v{vC}, 0x0c0c0400
        v_mov_b32 v{vC+1}, 0x04000c0c''')
    def tag_apply(r, vT, vFF):
        for i in range(4):
            a(f'v_bfi_b32 v{r+i}, v{vFF}, v{vT+i}, v{r+i}')
    def tag_check(units, vC, t0):
        for n, r in enumerate(units):
            a(f'v_perm_b32 v{t0+2*n}, v{r+1}, v{r}, v{vC}')
            a(f'v_perm_b32 v{t0+2*n+1}, v{r+3}, v{r+2}, v{vC+1}')
        for n, r in enumerate(units):
            a(f'v_or_b32 v{t0+2*n}, v{t0+2*n}, v{t0+2*n+1}')
            a(f'v_xor_b32 v{t0+2*n}, s7, v{t0+2*n}')
        for n in range(1, len(units)):
            a(f'v_or_b32 v{t0}, v{t0}, v{t0+2*n}')
        a(f'v_cmp_ne_u32 vcc, 0, v{t0}')
    def gather_loop(loads, units, vC, t0, first_issued=False, first_wait=None):
        L = a.label('Lg'); C = a.label('Lgc'); D = a.label('Lgd')
        a(f's_mov_b32 s11, {LIM_G}')
        if first_issued:
            a(f's_branch {C}')
        a(f'{L}:')
        for l in loads: a(l)
        a('s_waitcnt vmcnt(0)')
        a(f'{C}:')
        tag_check(units, vC, t0)
        a('s_and_b64 exec, exec, vcc')
        a(f's_cbranch_scc0 {D}')
        a(f'''s_sub_u32 s11, s11, 1
        s_cmp_lg_u32 s11, 0
        s_cbranch_scc1 {L}''')
        a(f'{D}:')
        a('s_mov_b64 exec, -1')
    def selectors(vS, vl, t0, half):
        a(f'''v_and_b32 v{t0}, 1, v{vl}
        v_cmp_eq_u32 vcc, 1, v{t0}
        v_mov_b32 v{t0+1}, 0x0c0c0100
        v_mov_b32 v{t0+2}, 0x01000c0c
        v_mov_b32 v{t0+3}, 0x00000202
        v_mov_b32 v{t0+4}, 0x02020000
        v_cndmask_b32 v{t0+1}, v{t0+1}, v{t0+2}, vcc
        v_cndmask_b32 v{t0+3}, v{t0+3}, v{t0+4}, vcc''')
        if half:
            a(f'''v_bfe_u32 v{t0}, v{vl}, 2, 1
            v_lshlrev_b32 v{t0+4}, 1, v{t0+3}
            v_mul_u32_u24 v{t0+2}, v{t0}, v{t0+4}
            v_lshrrev_b32 v{t0+4}, 16, v{t0+4}
            v_mul_u32_u24 v{t0+4}, v{t0}, v{t0+4}
            v_and_b32 v{t0+2}, 0xffff, v{t0+2}
            v_lshl_or_b32 v{t0+2}, v{t0+4}, 16, v{t0+2}
            v_add_u32 v{t0+1}, v{t0+1}, v{t0+2}''')
        a(f'''v_add_u32 v{t0+3}, v{t0+1}, v{t0+3}
        v_bfe_u32 v{t0}, v{vl}, 1, 2
        v_mov_b32 v{t0+2}, 0x0c0c0c0c''')
        for r in range(4):
            a(f'''v_cmp_eq_u32 vcc, {r}, v{t0}
            s_nop 1
            v_cndmask_b32 v{vS+2*r}, v{t0+2}, v{t0+1}, vcc
            v_cndmask_b32 v{vS+2*r+1}, v{t0+2}, v{t0+3}, vcc''')
    def gemv(n, srcs, wregs, acc, vS, vA, waits, first_zero=True):
        def perms(k):
            s0, s1, par = srcs[k]
            base = vA + 4 * (k & 1)
            for r in range(4):
                a(f'v_perm_b32 v{base+r}, v{s0}, v{s1}, v{vS+2*r+par}')
        perms(0)
        for k in range(n):
            if k + 1 < n:
                perms(k + 1)
            else:
                a('s_nop 1')
            if waits[k] is not None:
                a(f's_waitcnt vmcnt({waits[k]})')
            base = vA + 4 * (k & 1)
            c = '0' if (k == 0 and first_zero) else f'v[{acc}:{acc+3}]'
            a(f'v_mfma_f32_16x16x32_bf16 v[{acc}:{acc+3}], v[{base}:{base+3}], v[{wregs[k]}:{wregs[k]+3}], {c}')

    stamp(0)
    a('''s_cmp_ge_u32 s2, 256
    s_cbranch_scc1 L_exit
    s_load_dwordx16 s[32:47], s[0:1], 0
    s_load_dwordx8 s[48:55], s[0:1], 64
    s_load_dwordx2 s[56:57], s[0:1], 96
    v_lshrrev_b32 v1, 6, v0
    v_and_b32 v0, 63, v0
    s_lshr_b32 s4, s2, 3       ; h
    v_readfirstlane_b32 s3, v1 ; wave
    s_and_b32 s5, s2, 7        ; j
    v_lshrrev_b32 v2, 4, v0    ; g
    v_and_b32 v3, 15, v0       ; c
    v_mov_b32 v4, 0
    s_cmp_eq_u32 s3, 0
    s_cbranch_scc1 L_A
    s_cmp_eq_u32 s3, 5
    s_cbranch_scc1 L_B''')
    KR, VR, SC = 32, 96, 12
    QF, MK, ACC = 28, 8, 160
    a(f'''s_lshr_b32 s12, s5, 2      ; b
    s_and_b32 s13, s5, 3       ; s
    s_lshl_b32 s12, s12, 5
    s_add_u32 s12, s12, s4
    s_lshl_b32 s12, s12, 20
    s_lshl_b32 s13, s13, 16
    s_add_u32 s12, s12, s13
    s_sub_u32 s14, s3, 1       ; w
    s_lshl_b32 s13, s14, 10
    s_add_u32 s12, s12, s13
    s_add_u32 s12, s12, 786432
    v_lshlrev_b32 v1, 4, v0
    s_waitcnt lgkmcnt(0)''')
    srd(60, 34, 1 << 26)
    srd(64, 36, 1 << 26)
    a('s_barrier')
    n = 0
    for t, (sr, R) in enumerate(((60, KR), (64, VR))):
        for i in range(16):
            if n >= win1 and n < 16 + nv_win:
                a(f's_waitcnt vmcnt({win1-1})')
            a(f's_add_u32 s13, s12, {i*4096}')
            a(f'buffer_load_dwordx4 v[{R+4*i}:{R+4*i+3}], v1, s[{sr}:{sr+3}], s13 offen {ntflag}')
            n += 1
            if n == 3:
                a(f'''v_and_b32 v5, 1, v0
                v_cmp_eq_u32 vcc, 1, v5
                v_mov_b32 v6, 0xffff
                v_mov_b32 v7, 0xffff0000
                v_cndmask_b32 v6, v6, v7, vcc
                v_lshrrev_b32 v5, 1, v3''')
                for r in range(4):
                    a(f'''v_cmp_eq_u32 vcc, {r}, v5
                    s_nop 1
                    v_cndmask_b32 v{MK+r}, 0, v6, vcc''')
    a(f'''v_mov_b32 v5, 1
    s_mov_b64 exec, 1
    ds_add_u32 v4, v5 offset:{L_VDONE}
    s_mov_b64 exec, -1''')
    stamp(1)
    lds_poll(L_QFLAG, 1, 5, 4)
    a(f'''v_lshlrev_b32 v5, 4, v3
    ds_read_b128 v[{QF}:{QF+3}], v5 offset:{L_Q}
    s_waitcnt vmcnt(16) lgkmcnt(0)''')
    stamp(2)
    for r in range(4):
        for i in range(16):
            c = '0' if r == 0 else f'v{SC+i}'
            a(f'v_dot2_f32_bf16 v{SC+i}, v{KR+4*i+r}, v{QF+r}, {c}')
    for rot in (8, 4, 2, 1):
        for i in range(16):
            a(f'v_add_f32_dpp v{SC+i}, v{SC+i}, v{SC+i} row_ror:{rot} {DPPALL}')
    a(f's_mov_b32 s15, {SCALE}')
    a(f's_mov_b32 s16, {LOG2E}')
    a('s_mov_b32 s17, 0xffff0000')
    for i in range(0, 16, 2):
        a(f'v_cvt_pk_bf16_f32 v{KR+i}, v{SC+i}, v{SC+i+1}')
    for i in range(0, 16, 2):
        a(f'v_lshlrev_b32 v{SC+i}, 16, v{KR+i}')
        a(f'v_and_b32 v{SC+i+1}, s17, v{KR+i}')
    for i in range(16):
        a(f'v_mul_f32 v{SC+i}, s15, v{SC+i}')
    for i in range(0, 16, 2):
        a(f'v_cvt_pk_bf16_f32 v{KR+i}, v{SC+i}, v{SC+i+1}')
    for i in range(0, 16, 2):
        a(f'v_lshlrev_b32 v{SC+i}, 16, v{KR+i}')
        a(f'v_and_b32 v{SC+i+1}, s17, v{KR+i}')
    a(f'v_max3_f32 v5, v{SC}, v{SC+1}, v{SC+2}')
    a(f'v_max3_f32 v6, v{SC+3}, v{SC+4}, v{SC+5}')
    a(f'v_max3_f32 v7, v{SC+6}, v{SC+7}, v{SC+8}')
    a(f'v_max3_f32 v5, v5, v{SC+9}, v{SC+10}')
    a(f'v_max3_f32 v6, v6, v{SC+11}, v{SC+12}')
    a(f'v_max3_f32 v7, v7, v{SC+13}, v{SC+14}')
    a(f'v_max3_f32 v5, v5, v6, v{SC+15}')
    a(f'v_max_f32 v5, v5, v7')
    a('''v_mov_b32 v6, v5
    s_nop 1
    v_permlane32_swap_b32 v5, v6
    s_nop 1
    v_max_f32 v5, v5, v6
    v_mov_b32 v6, v5
    s_nop 1
    v_permlane16_swap_b32 v5, v6
    s_nop 1
    v_max_f32 v5, v5, v6        ; m
    v_mul_f32 v7, s16, v5''')
    for i in range(16):
        a(f'v_fma_f32 v{SC+i}, v{SC+i}, s16, -v7')
    for i in range(16):
        a(f'v_exp_f32 v{SC+i}, v{SC+i}')
    for i in range(16):
        a(f'v_cvt_pk_bf16_f32 v{KR+4*i+3}, v{SC+i}, v{SC+i}')
    for i in range(16):
        for r in range(4):
            a(f'v_and_b32 v{KR+4*i+r}, v{MK+r}, v{KR+4*i+3}')
    for stp in (1, 2, 4, 8):
        for i in range(0, 16, 2 * stp):
            a(f'v_add_f32 v{SC+i}, v{SC+i}, v{SC+i+stp}')
    a(f'''v_mov_b32 v6, v{SC}
    v_mov_b32 v7, v{SC}
    s_nop 1
    v_permlane32_swap_b32 v6, v7
    s_nop 1
    v_add_f32 v6, v6, v7
    v_mov_b32 v7, v6
    s_nop 1
    v_permlane16_swap_b32 v6, v7
    s_nop 1
    v_add_f32 v7, v6, v7        ; l
    v_mov_b32 v6, v5            ; m
    s_lshl_b32 s13, s14, 3
    v_mov_b32 v{SC+1}, s13
    v_mov_b32 v{SC+2}, 1
    s_mov_b64 exec, 1
    ds_write_b64 v{SC+1}, v[6:7] offset:{L_ST}
    ds_add_u32 v4, v{SC+2} offset:{L_SCNT}
    s_mov_b64 exec, -1''')
    a(f'''v_lshlrev_b32 v6, 5, v3
    v_lshl_add_u32 v6, v2, 4, v6
    s_lshl_b32 s13, s14, 9
    v_add_u32 v6, s13, v6''')
    stamp(3)
    for i in range(16):
        a(f's_waitcnt vmcnt({15-i})')
        c = '0' if i == 0 else f'v[{ACC}:{ACC+3}]'
        a(f'v_mfma_f32_16x16x32_bf16 v[{ACC}:{ACC+3}], v[{KR+4*i}:{KR+4*i+3}], v[{VR+4*i}:{VR+4*i+3}], {c}')
    stamp(4)
    a(f'''s_mov_b32 exec_hi, 0
    s_nop 6
    ds_write_b128 v6, v[{ACC}:{ACC+3}] offset:{L_O}
    s_waitcnt lgkmcnt(0)
    s_barrier''')
    finish(5)

    a('L_A:')
    XR, SEL, AT, WQ, GU = 8, 16, 24, 32, 96
    AQ, VT, VFF, VC = 160, 5, 164, 165
    VT = 32
    a('s_setprio 3')
    a(f'''v_mov_b32 v5, 0
    v_mov_b32 v6, 0
    v_mov_b32 v7, 0
    ds_write_b128 v4, v[4:7] offset:0
    v_lshrrev_b32 v8, 3, v3          ; b = c>>3
    v_lshlrev_b32 v8, 10, v8
    v_lshl_add_u32 v8, v2, 5, v8     ; + g*32
    v_lshlrev_b32 v9, 17, v2
    v_lshl_add_u32 v1, v3, 4, v9
    s_lshl_b32 s12, s5, 7            ; j*128 bytes (x)
    s_lshl_b32 s13, s5, 19           ; 64j*8192
    s_lshl_b32 s14, s4, 8
    s_add_u32 s13, s13, s14
    v_mov_b32 v24, v8
    s_waitcnt lgkmcnt(0)
    s_load_dword s6, s[56:57], 0 glc''')
    srd(60, 32, 2048)
    srd(64, 38, 1 << 22)
    srd(68, 56, WS_SIZE)
    a(f'buffer_load_dwordx4 v[8:11], v24, s[60:63], s12 offen')
    a(f'buffer_load_dwordx4 v[12:15], v24, s[60:63], s12 offen offset:16')
    for k in range(16):
        a(f's_add_u32 s14, s13, {k*8192}')
        a(f'buffer_load_dwordx4 v[{WQ+4*k}:{WQ+4*k+3}], v1, s[64:67], s14 offen {ntflag}')
    a('s_barrier')
    selectors(SEL, 0, 24, False)
    a(f'''v_lshrrev_b32 v5, 1, v2
    v_lshlrev_b32 v5, 9, v5
    v_lshl_add_u32 v5, v3, 5, v5
    v_and_b32 v6, 1, v2
    v_lshl_add_u32 v5, v6, 4, v5
    s_lshl_b32 s15, s2, 10
    s_add_u32 s15, s15, {WS_QP}
    s_waitcnt lgkmcnt(0)''')
    tag_compute()
    srcs = [(XR + k // 2, XR + k // 2, k & 1) for k in range(16)]
    a('s_waitcnt vmcnt(16)')
    gemv(16, srcs, [WQ + 4 * k for k in range(16)], AQ, SEL, AT, [15 - k for k in range(16)])
    VT, VFF, VC = 164, 6, 92
    tag_regs(VT, VFF, VC)
    a('s_nop 2')
    tag_apply(AQ, VT, VFF)
    a(f'buffer_store_dwordx4 v[{AQ}:{AQ+3}], v5, s[68:71], s15 offen sc1')
    stamp(1)
    a('s_cmp_ge_u32 s4, 22')
    a('s_cbranch_scc1 L_A_nogu1')
    a(f'''v_and_b32 v32, 7, v3
    s_cmp_eq_u32 s4, 21
    s_cselect_b32 s14, 3, 7
    v_and_b32 v32, s14, v32
    v_lshlrev_b32 v32, 4, v32
    s_mov_b32 s14, {16*2752}
    v_mad_u32_u24 v32, v2, s14, v32
    s_mul_i32 s14, s5, {64*2752}
    s_lshl_b32 s16, s4, 7
    s_add_u32 s14, s14, s16
    v_add_u32 v32, s14, v32
    v_mov_b32 v33, 0
    v_cmp_gt_u32 vcc, 8, v3
    v_mov_b32 v34, s46
    v_mov_b32 v35, s47
    v_mov_b32 v36, s44
    v_mov_b32 v37, s45
    v_cndmask_b32 v34, v34, v36, vcc
    v_cndmask_b32 v35, v35, v37, vcc
    v_lshl_add_u64 v[34:35], v[32:33], 0, v[34:35]
    s_mov_b32 s16, {2*2752}
    s_mov_b32 s17, 0''')
    for k in range(0, 16, 2):
        a(f'global_load_dwordx4 v[{GU+4*k}:{GU+4*k+3}], v[34:35], off {ntflag}')
        a(f'global_load_dwordx4 v[{GU+4*k+4}:{GU+4*k+7}], v[34:35], off offset:2752 {ntflag}')
        if k < 14:
            a('v_lshl_add_u64 v[34:35], v[34:35], 0, s[16:17]')
    a('L_A_nogu1:')
    a(f'''s_lshl_b32 s14, s4, 13
    s_lshr_b32 s16, s5, 2
    s_lshl_b32 s16, s16, 9
    s_add_u32 s14, s14, s16
    s_add_u32 s14, s14, {WS_QP}''')
    if spoll:
        a(f'''s_add_u32 s18, s56, s14
        s_addc_u32 s19, s57, 0
        s_lshr_b32 s9, s7, 24
        s_mov_b32 s11, {LIM_G}''')
        a('L_A_sp:')
        for p in range(8):
            a(f's_load_dword s{20+p}, s[18:19], {p*1024+508} glc')
        a('s_waitcnt lgkmcnt(0)')
        for p in range(8):
            a(f's_xor_b32 s{20+p}, s{20+p}, s9')
        for p in range(1, 8):
            a(f's_or_b32 s20, s20, s{20+p}')
        a('''s_and_b32 s20, s20, 0xff
        s_cbranch_scc0 L_A_spd
        s_sub_u32 s11, s11, 1
        s_cmp_lg_u32 s11, 0
        s_cbranch_scc1 L_A_sp''')
        a('L_A_spd:')
    stamp(2)
    QG = 40
    a(f'''v_and_b32 v36, 1, v0
    v_lshlrev_b32 v36, 10, v36
    v_lshrrev_b32 v37, 1, v0
    v_lshl_add_u32 v36, v37, 4, v36
    s_add_u32 s16, s14, 4096''')
    qloads = [f'buffer_load_dwordx4 v[{QG+4*k}:{QG+4*k+3}], v36, s[68:71], s{14 if k < 2 else 16} offen offset:{(k&1)*2048} sc1' for k in range(4)]
    for l in qloads: a(l)
    a('s_cmp_ge_u32 s4, 22')
    a('s_cbranch_scc1 L_A_nogu2')
    gemv(16, srcs, [GU + 4 * k for k in range(16)], AQ, SEL, AT, [4 + 15 - k for k in range(16)])
    a(f'''v_lshrrev_b32 v38, 3, v3
    v_lshlrev_b32 v38, 9, v38
    v_lshrrev_b32 v39, 1, v2
    v_lshl_add_u32 v38, v39, 8, v38
    v_and_b32 v39, 7, v3
    v_lshl_add_u32 v38, v39, 5, v38
    v_and_b32 v39, 1, v2
    v_lshl_add_u32 v38, v39, 4, v38
    s_lshl_b32 s15, s2, 10
    s_add_u32 s15, s15, {WS_GU}''')
    tag_apply(AQ, VT, VFF)
    a(f'buffer_store_dwordx4 v[{AQ}:{AQ+3}], v38, s[68:71], s15 offen sc1')
    a('s_waitcnt vmcnt(1)')
    a('s_branch L_A_q')
    a('L_A_nogu2:')
    a('s_waitcnt vmcnt(0)')
    a('L_A_q:')
    gather_loop(qloads, [QG + 4 * k for k in range(4)], VC, 56, first_issued=True)
    for k in range(1, 4):
        for r in range(4):
            a(f'v_add_f32 v{QG+r}, v{QG+r}, v{QG+4*k+r}')
    a('s_nop 0')
    for r in range(4):
        a(f'v_add_f32_dpp v{QG+4+r}, v{QG+r}, v{QG+r} quad_perm:[1,0,3,2] {DPPALL}')
    a(f'''v_cvt_pk_bf16_f32 v{QG}, v{QG+4}, v{QG+5}
    v_cvt_pk_bf16_f32 v{QG+1}, v{QG+6}, v{QG+7}
    v_lshlrev_b32 v37, 3, v37
    v_mov_b32 v38, 1
    ds_write_b64 v37, v[{QG}:{QG+1}] offset:{L_Q}
    ds_write_b32 v4, v38 offset:{L_QFLAG}''')
    stamp(3)
    a(f'''s_lshl_b32 s14, s4, 1
    s_lshr_b32 s16, s5, 2
    s_add_u32 s14, s14, s16        ; G
    s_mul_i32 s16, s14, 43
    s_lshr_b32 s17, s16, 3         ; f0/4
    s_add_u32 s16, s16, 43
    s_lshr_b32 s16, s16, 3
    s_sub_u32 s16, s16, s17
    v_lshrrev_b32 v36, 3, v0       ; unit
    v_add_u32 v37, s17, v36        ; f/4
    v_lshrrev_b32 v38, 4, v37      ; cp
    v_lshlrev_b32 v38, 13, v38
    v_and_b32 v37, 15, v37
    v_lshl_add_u32 v38, v37, 4, v38
    v_and_b32 v37, 1, v0
    v_lshl_add_u32 v38, v37, 10, v38
    v_bfe_u32 v37, v0, 1, 1
    v_lshl_add_u32 v38, v37, 9, v38
    v_bfe_u32 v37, v0, 2, 1
    v_lshl_add_u32 v38, v37, 8, v38
    s_mov_b32 s14, {WS_GU}
    s_mov_b32 s15, {WS_GU + 4096}''')
    for r in range(16):
        a(f'v_mov_b32 v{QG+r}, 0')
    a('v_cmp_gt_u32 vcc, s16, v36')
    a('s_and_b64 exec, exec, vcc')
    gloads = [f'buffer_load_dwordx4 v[{QG+4*k}:{QG+4*k+3}], v38, s[68:71], s{14 if k < 2 else 15} offen offset:{(k&1)*2048} sc1' for k in range(4)]
    gather_loop(gloads, [QG + 4 * k for k in range(4)], VC, 56)
    for k in range(1, 4):
        for r in range(4):
            a(f'v_add_f32 v{QG+r}, v{QG+r}, v{QG+4*k+r}')
    a('s_nop 0')
    for r in range(4):
        a(f'v_add_f32_dpp v{QG+4+r}, v{QG+r}, v{QG+r} quad_perm:[1,0,3,2] {DPPALL}')
    a('s_mov_b32 s17, 0xffff0000')
    a(f'''v_cvt_pk_bf16_f32 v{QG}, v{QG+4}, v{QG+5}
    v_cvt_pk_bf16_f32 v{QG+1}, v{QG+6}, v{QG+7}
    v_lshlrev_b32 v{QG+4}, 16, v{QG}
    v_and_b32 v{QG+5}, s17, v{QG}
    v_lshlrev_b32 v{QG+6}, 16, v{QG+1}
    v_and_b32 v{QG+7}, s17, v{QG+1}
    s_nop 0''')
    for r in range(4):
        a(f'v_mul_f32_dpp v{QG+8+r}, v{QG+4+r}, v{QG+4+r} quad_perm:[2,3,0,1] {DPPALL}')
    a(f'''v_cvt_pk_bf16_f32 v{QG}, v{QG+8}, v{QG+9}
    v_cvt_pk_bf16_f32 v{QG+1}, v{QG+10}, v{QG+11}
    v_lshlrev_b32 v37, 6, v37
    v_lshl_add_u32 v37, v36, 1, v37
    ds_write_b16 v37, v{QG} offset:{L_H}
    ds_write_b16_d16_hi v37, v{QG} offset:{L_H+16}
    ds_write_b16 v37, v{QG+1} offset:{L_H+32}
    ds_write_b16_d16_hi v37, v{QG+1} offset:{L_H+48}''')
    stamp(4)
    lds_poll(L_SCNT, 4, 36, 4)
    a(f'''ds_read_b128 v[40:43], v4 offset:{L_ST}
    ds_read_b128 v[44:47], v4 offset:{L_ST+16}
    s_mov_b32 s16, {LOG2E}
    v_lshlrev_b32 v38, 4, v0
    s_lshl_b32 s15, s2, 10
    s_add_u32 s15, s15, {WS_OP}
    s_waitcnt lgkmcnt(0)
    v_max3_f32 v48, v40, v42, v44
    v_max_f32 v48, v48, v46         ; M
    v_sub_f32 v52, v40, v48
    v_sub_f32 v53, v42, v48
    v_sub_f32 v54, v44, v48
    v_sub_f32 v55, v46, v48
    v_mul_f32 v52, s16, v52
    v_mul_f32 v53, s16, v53
    v_mul_f32 v54, s16, v54
    v_mul_f32 v55, s16, v55
    v_exp_f32 v52, v52
    v_exp_f32 v53, v53
    v_exp_f32 v54, v54
    v_exp_f32 v55, v55
    s_nop 0
    v_mul_f32 v49, v52, v41
    v_fma_f32 v49, v53, v43, v49
    v_fma_f32 v49, v54, v45, v49
    v_fma_f32 v49, v55, v47, v49    ; L
    v_mov_b32 v50, 0
    v_mov_b32 v51, 0''')
    tag_apply(48, VT, VFF)
    a(f'''s_mov_b64 exec, 1
    buffer_store_dwordx4 v[48:51], v4, s[68:71], s15 offen offset:512 sc1
    s_mov_b32 exec_lo, -1''')
    stamp(5)
    a('s_barrier')
    for w in range(4):
        a(f'ds_read_b128 v[{60+4*w}:{63+4*w}], v38 offset:{L_O+512*w}')
    for w in range(4):
        a(f's_waitcnt lgkmcnt({3-w})')
        for r in range(4):
            if w == 0:
                a(f'v_mul_f32 v{60+r}, v52, v{60+r}')
            else:
                a(f'v_fma_f32 v{60+r}, v{52+w}, v{60+4*w+r}, v{60+r}')
    tag_apply(60, VT, VFF)
    a(f'buffer_store_dwordx4 v[60:63], v38, s[68:71], s15 offen sc1')
    stamp(6)
    finish(7)

    a('L_B:')
    SEL, AT, WD, WO = 16, 24, 32, 56
    OG, SG, HS = 120, 128, 132
    ACA, ACF = 136, 140
    VT, VFF, VC = 144, 148, 149
    VG, VOG = 151, 152
    T0 = 153
    a(f'''v_lshlrev_b32 v1, 4, v0
    s_waitcnt lgkmcnt(0)
    s_load_dword s6, s[56:57], 0 glc''')
    srd(60, 32, 2048)
    srd(64, 50, 1024)
    srd(68, 56, WS_SIZE)
    a('s_barrier')
    a(f'''buffer_load_dwordx4 v[32:35], v1, s[60:63], 0 offen
    buffer_load_dwordx4 v[36:39], v1, s[60:63], 0 offen offset:1024
    buffer_load_dwordx4 v[40:43], v1, s[64:67], 0 offen''')
    selectors(SEL, 0, 24, True)
    a('s_waitcnt lgkmcnt(0)')
    tag_compute()
    tag_regs(VT, VFF, VC)
    a('s_mov_b32 s17, 0xffff0000')
    a('s_waitcnt vmcnt(0)')
    for d in range(4):
        a(f'v_lshlrev_b32 v{44+2*d}, 16, v{40+d}')
        a(f'v_and_b32 v{45+2*d}, s17, v{40+d}')
    for b in range(2):
        for d in range(4):
            a(f'v_lshlrev_b32 v{52+2*d}, 16, v{32+4*b+d}')
            a(f'v_and_b32 v{53+2*d}, s17, v{32+4*b+d}')
        for e in range(8):
            a(f'v_mul_f32 v{52+e}, v{52+e}, v{44+e}')
        for d in range(4):
            a(f'v_cvt_pk_bf16_f32 v{60+d}, v{52+2*d}, v{53+2*d}')
        for d in range(4):
            a(f'v_lshlrev_b32 v{52+2*d}, 16, v{60+d}')
            a(f'v_and_b32 v{53+2*d}, s17, v{60+d}')
        for stp in (1, 2, 4):
            for e in range(0, 8, 2 * stp):
                a(f'v_add_f32 v{52+e}, v{52+e}, v{52+e+stp}')
        a(f'v_mov_b32 v{64+b}, v52')
    a(f'''s_nop 1
    v_permlane32_swap_b32 v64, v65
    s_nop 1
    v_add_f32 v64, v64, v65
    v_mov_b32 v65, v64
    s_nop 1
    v_permlane16_swap_b32 v64, v65
    s_nop 1
    v_add_f32 v64, v64, v65''')
    for rot in (8, 4, 2, 1):
        a('s_nop 1')
        a(f'v_add_f32_dpp v64, v64, v64 row_ror:{rot} {DPPALL}')
    a(f'''v_cvt_pk_bf16_f32 v64, v64, v64
    s_mov_b32 s16, {LOG2E}
    v_and_b32 v64, s17, v64
    v_mul_f32 v64, s16, v64
    v_sub_f32 v64, 0, v64
    v_exp_f32 v64, v64
    s_nop 0
    v_add_f32 v64, 1.0, v64
    v_rcp_f32 v64, v64
    s_nop 0
    v_cvt_pk_bf16_f32 v64, v64, v64
    v_and_b32 v{VG}, s17, v64
    v_sub_f32 v64, 1.0, v{VG}
    v_cvt_pk_bf16_f32 v64, v64, v64
    v_and_b32 v{VOG}, s17, v64''')
    a(f'''s_lshr_b32 s12, s5, 2       ; rh
    s_and_b32 s13, s5, 3        ; qd
    s_lshl_b32 s14, s4, 1
    s_add_u32 s14, s14, s12     ; G
    s_mul_i32 s15, s14, 43
    s_lshr_b32 s15, s15, 3
    s_lshl_b32 s15, s15, 12     ; f0*1024
    s_lshl_b32 s18, s13, 8
    s_add_u32 s15, s15, s18
    s_lshl_b32 s14, s14, 16
    s_add_u32 s14, s14, s18
    v_lshlrev_b32 v5, 4, v3
    v_lshl_add_u32 v6, v2, 10, v5
    v_lshl_add_u32 v5, v2, 14, v5''')
    srd(60, 48, 1376 * 1024)
    srd(64, 40, 1 << 22)
    srd(72, 52, 2048)
    a(f'''v_bfe_u32 v8, v0, 3, 1
    v_lshlrev_b32 v8, 12, v8
    v_and_b32 v9, 3, v0
    v_lshl_add_u32 v8, v9, 10, v8
    v_lshl_add_u32 v9, v2, 6, v8
    v_bfe_u32 v10, v0, 2, 1
    v_lshl_add_u32 v9, v10, 5, v9
    s_lshl_b32 s19, s12, 8
    v_add_u32 v9, s19, v9
    s_lshl_b32 s19, s4, 13
    s_add_u32 s19, s19, {WS_OP}
    v_bfe_u32 v10, v0, 3, 1
    v_lshlrev_b32 v10, 6, v10
    v_lshl_add_u32 v10, v2, 4, v10
    v_lshrrev_b32 v11, 1, v2
    v_lshlrev_b32 v11, 9, v11
    v_lshl_add_u32 v11, v3, 5, v11
    v_and_b32 v12, 1, v2
    v_lshl_add_u32 v11, v12, 4, v11
    s_lshl_b32 s20, s2, 10
    s_add_u32 s20, s20, {WS_FP}
    v_lshlrev_b32 v12, 12, v0
    s_and_b32 s21, s2, 3
    s_lshl_b32 s22, s21, 10
    s_lshr_b32 s23, s2, 2
    s_and_b32 s24, s23, 1
    s_lshl_b32 s25, s24, 9
    s_add_u32 s22, s22, s25
    s_lshr_b32 s23, s23, 1
    s_lshl_b32 s25, s23, 4
    s_add_u32 s22, s22, s25
    s_add_u32 s22, s22, {WS_FP}
    s_lshl_b32 s24, s24, 10
    s_lshl_b32 s21, s21, 8
    s_add_u32 s24, s24, s21
    s_lshl_b32 s23, s23, 3
    s_add_u32 s24, s24, s23
    v_and_b32 v13, 1, v2
    v_lshlrev_b32 v13, 2, v13
    v_lshrrev_b32 v14, 1, v2
    v_lshl_add_u32 v13, v14, 1, v13''')
    stamp(1)
    lds_poll(L_VDONE, 4, 7, 4)
    stamp(2)
    for k in range(6):
        a(f's_add_u32 s18, s15, {k*4096}')
        a(f'buffer_load_dwordx4 v[{WD+4*k}:{WD+4*k+3}], v6, s[60:63], s18 offen {ntflag}')
    for k in range(16):
        if k % 4 == 0:
            a(f's_add_u32 s18, s14, {k*1024}')
        a(f'buffer_load_dwordx4 v[{WO+4*k}:{WO+4*k+3}], v5, s[64:67], s18 offen offset:{(k%4)*1024} {ntflag}')
    a('s_setprio 3')
    stamp(3)
    a('s_barrier')
    oloads = [f'buffer_load_dwordx4 v[{OG}:{OG+3}], v9, s[68:71], s19 offen sc1',
              f'buffer_load_dwordx4 v[{OG+4}:{OG+7}], v9, s[68:71], s19 offen offset:16 sc1',
              f'buffer_load_dwordx4 v[{SG}:{SG+3}], v8, s[68:71], s19 offen offset:512 sc1']
    for l in oloads: a(l)
    a(f'ds_read_b128 v[{HS}:{HS+3}], v10 offset:{L_H}')
    a('s_waitcnt lgkmcnt(0)')
    hs = [(HS + k // 2, HS + k // 2, k & 1) for k in range(6)]
    gemv(6, hs, [WD + 4 * k for k in range(6)], ACF, SEL, AT, [19 + 5 - k for k in range(6)])
    a('s_nop 7')
    for r in range(4):
        a(f'v_mul_f32 v{ACF+r}, v{VOG}, v{ACF+r}')
    a('s_waitcnt vmcnt(0)')
    stamp(4)
    gather_loop(oloads, [OG, OG + 4, SG], VC, T0, first_issued=True)
    stamp(5)
    m, l = SG, SG + 1
    a(f'''v_and_b32 v{m}, s17, v{m}
    s_nop 1
    v_max_f32_dpp v{T0}, v{m}, v{m} quad_perm:[1,0,3,2] {DPPALL}
    s_nop 1
    v_max_f32_dpp v{T0}, v{T0}, v{T0} quad_perm:[2,3,0,1] {DPPALL}
    v_sub_f32 v{T0}, v{m}, v{T0}
    v_mul_f32 v{T0}, s16, v{T0}
    v_exp_f32 v{T0}, v{T0}
    s_nop 0
    v_mul_f32 v{T0+1}, v{T0}, v{l}
    s_nop 1
    v_add_f32_dpp v{T0+1}, v{T0+1}, v{T0+1} quad_perm:[1,0,3,2] {DPPALL}
    s_nop 1
    v_add_f32_dpp v{T0+1}, v{T0+1}, v{T0+1} quad_perm:[2,3,0,1] {DPPALL}
    v_rcp_f32 v{T0+1}, v{T0+1}
    s_nop 0
    v_mul_f32 v{T0}, v{T0}, v{T0+1}''')
    for e in range(8):
        a(f'v_mul_f32 v{OG+e}, v{T0}, v{OG+e}')
    for qp in ('[1,0,3,2]', '[2,3,0,1]'):
        for e in range(8):
            a(f'v_add_f32_dpp v{OG+e}, v{OG+e}, v{OG+e} quad_perm:{qp} {DPPALL}')
    X, Y = T0 + 2, T0 + 6
    for d in range(4):
        a(f'v_cvt_pk_bf16_f32 v{X+d}, v{OG+2*d}, v{OG+2*d+1}')
    a('s_nop 0')
    for d in range(4):
        a(f'v_mov_b32_dpp v{Y+d}, v{X+d} row_half_mirror {DPPALL}')
    osrc = []
    for k in range(16):
        d = (k % 8) // 2
        if k < 8: osrc.append((Y + d, X + d, k & 1))
        else: osrc.append((X + d, Y + d, k & 1))
    gemv(16, osrc, [WO + 4 * k for k in range(16)], ACA, SEL, AT, [None] * 16)
    a('s_nop 7')
    for r in range(4):
        a(f'v_fma_f32 v{ACA+r}, v{VG}, v{ACA+r}, v{ACF+r}')
    tag_apply(ACA, VT, VFF)
    a(f'buffer_store_dwordx4 v[{ACA}:{ACA+3}], v11, s[68:71], s20 offen sc1')
    stamp(6)
    FG = OG
    gather_loop([f'buffer_load_dwordx4 v[{FG}:{FG+3}], v12, s[68:71], s22 offen sc1'], [FG], VC, T0)
    a(f'''v_permlane32_swap_b32 v{FG}, v{FG+1}
    v_permlane32_swap_b32 v{FG+2}, v{FG+3}
    s_nop 1
    v_add_f32 v{FG}, v{FG}, v{FG+1}
    v_add_f32 v{FG+2}, v{FG+2}, v{FG+3}
    s_nop 1
    v_permlane16_swap_b32 v{FG}, v{FG+2}
    s_nop 1
    v_add_f32 v{FG}, v{FG}, v{FG+2}''')
    for rot in (8, 4, 2, 1):
        a('s_nop 1')
        a(f'v_add_f32_dpp v{FG}, v{FG}, v{FG} row_ror:{rot} {DPPALL}')
    a(f'''v_cvt_pk_bf16_f32 v{FG}, v{FG}, v{FG}
    s_mov_b32 s26, 0x00010001
    s_mov_b32 s27, 0x00010001
    s_mov_b64 exec, s[26:27]
    buffer_store_short v{FG}, v13, s[72:75], s24 offen sc1''')
    a(f'''s_cmp_lg_u32 s2, 0
    s_cbranch_scc1 L_B_end
    s_add_u32 s6, s6, 1
    v_mov_b32 v5, s6
    s_mov_b64 exec, 1
    buffer_store_dword v5, v4, s[68:71], 0 offen sc1''')
    a('L_B_end:')
    stamp(7)
    finish(8)
    a('L_exit:')
    txt = kernel_file([(NAME + '_kernel', 256, 384, LDS_BYTES)], [(NAME + '_kernel', a.text(), 168, 100, 168)])
    open(fname, 'w').write(txt)

if __name__ == '__main__':
    gen('k_v1.s')
    gen('k_v1_st.s', stamps=True)
```

```python
import sys
from asmlib import *

WS_QP = 0x1000
WS_GU = 0x80000
WS_OP = 0xC0000
WS_FP = 0x100000
WS_C2 = 0x150000
WS_SIZE = 0x200000
STAMP_OFF = 128 << 20
L_QFLAG, L_VDONE, L_SCNT, L_OCNT, L_EP = 0, 4, 8, 12, 16
L_Q, L_H, L_ST, L_O = 64, 320, 448, 512
LDS_BYTES = 512 + 2048
SCALE = 0x3DB504F3
LOG2E = 0x3FB8AA3B
DPPALL = 'row_mask:0xf bank_mask:0xf'
KN = NAME + '_kernel'

DOC = '''; ---------------------------------------------------------------------------------------------
; ---------------------------------------------------------------------------------------------
'''

def gen(fname, stamps=False, win=5, n1=26, vsig=8, LIM_LDS=400000, LIM_G=40000, LIM_H=300):
    nt = 'nt'
    a = Asm()
    tail = []
    def stamp(i):
        if stamps: a(f's_memrealtime s[{80+2*i}:{81+2*i}]')
    def srd(base, ptr, size):
        a(f'''s_mov_b64 s[{base}:{base+1}], s[{ptr}:{ptr+1}]
        s_mov_b32 s{base+2}, {size}
        s_mov_b32 s{base+3}, 0x20000''')
    def finish(nst):
        if stamps:
            a('s_mov_b64 exec, 1')
            a('s_waitcnt lgkmcnt(0)')
            srd(76, 56, 0x10000000)
            a(f'''s_mul_i32 s10, s2, 6
            s_add_u32 s10, s10, s3
            s_lshl_b32 s10, s10, 5
            s_add_u32 s10, s10, {STAMP_OFF}
            v_mov_b32 v1, 0''')
            for i in range(8):
                a(f'v_mov_b32 v{8+i}, s{80+2*min(i, nst-1)}')
            a('buffer_store_dwordx4 v[8:11], v1, s[76:79], s10 offen')
            a('buffer_store_dwordx4 v[12:15], v1, s[76:79], s10 offen offset:16')
        a('s_endpgm')
    def dry_enter(label):
        a(f'''s_mov_b64 s[58:59], 0
        s_mov_b64 exec, 0
        s_branch {label}''')
    def dry_leave():
        a('''s_mov_b64 s[58:59], -1
        s_mov_b64 exec, -1''')
    def mem(lines):
        L = a.label('Lm')
        a(f's_cbranch_execz {L}')
        for l in lines: a(l)
        a(f'{L}:')
    def lds_poll(off, target, vtmp, extra=()):
        L = a.label('Lp'); D = a.label('Lpd')
        a(f's_mov_b32 s11, {LIM_LDS}')
        a(f'{L}:')
        a(f'ds_read_b32 v{vtmp}, v4 offset:{off}')
        for l in extra: a(l)
        a(f'''s_sub_u32 s11, s11, 1
        s_cbranch_scc1 {D}
        s_waitcnt lgkmcnt({len(extra)})
        v_readfirstlane_b32 s10, v{vtmp}
        s_cmp_lt_u32 s10, {target}
        s_cbranch_scc1 {L}''')
        a(f'{D}:')
    def tag_compute():
        a('''s_mul_i32 s7, s6, 0x9E3779B1
        s_add_u32 s7, s7, 0x7F4A7C15
        s_lshr_b32 s8, s7, 15
        s_xor_b32 s7, s7, s8
        s_mul_i32 s7, s7, 0x85EBCA6B
        s_lshr_b32 s8, s7, 13
        s_xor_b32 s7, s7, s8''')
    def tag_apply(r, vT, vFF):
        for i in range(4):
            a(f'v_bfi_b32 v{r+i}, v{vFF}, v{vT+i}, v{r+i}')
    def tag_check_lines(units, vC, t0):
        L = []
        for n, r in enumerate(units):
            L.append(f'v_perm_b32 v{t0+2*n}, v{r+1}, v{r}, v{vC}')
            L.append(f'v_perm_b32 v{t0+2*n+1}, v{r+3}, v{r+2}, v{vC+1}')
        for n, r in enumerate(units):
            L.append(f'v_or_b32 v{t0+2*n}, v{t0+2*n}, v{t0+2*n+1}')
            L.append(f'v_xor_b32 v{t0+2*n}, s7, v{t0+2*n}')
        for n in range(1, len(units)):
            L.append(f'v_or_b32 v{t0}, v{t0}, v{t0+2*n}')
        L.append(f'v_cmp_ne_u32 vcc, 0, v{t0}')
        return L
    def gather_check(loads, units, vC, t0):
        L = a.label('Lg'); C = a.label('Lgc')
        a(f's_mov_b32 s11, {LIM_G}')
        a(f'{C}:')
        for l in tag_check_lines(units, vC, t0): a(l)
        a('s_and_b64 exec, exec, vcc')
        a(f's_cbranch_scc1 {L}')
        a(f'{L}d:')
        a('s_mov_b64 exec, s[58:59]')
        tail.append([f'{L}:', 's_sub_u32 s11, s11, 1', f's_cbranch_scc1 {L}d'] + loads + ['s_waitcnt vmcnt(0)', f's_branch {C}'])
    def selectors(vS, t0):
        a(f'''v_and_b32 v{t0}, 1, v0
        v_cmp_eq_u32 vcc, 1, v{t0}
        v_mov_b32 v{t0+1}, 0x0c0c0100
        v_mov_b32 v{t0+2}, 0x01000c0c
        v_mov_b32 v{t0+3}, 0x0c0c0302
        v_mov_b32 v{t0+4}, 0x03020c0c
        v_cndmask_b32 v{t0+1}, v{t0+1}, v{t0+2}, vcc
        v_cndmask_b32 v{t0+3}, v{t0+3}, v{t0+4}, vcc
        v_bfe_u32 v{t0}, v0, 1, 2
        v_mov_b32 v{t0+2}, 0x0c0c0c0c''')
        for r in range(4):
            a(f'''v_cmp_eq_u32 vcc, {r}, v{t0}
            s_nop 1
            v_cndmask_b32 v{vS+2*r}, v{t0+2}, v{t0+1}, vcc
            v_cndmask_b32 v{vS+2*r+1}, v{t0+2}, v{t0+3}, vcc''')
    def gemv(n, src, wregs, acc, vS, vA, waits):
        def perms(k):
            base = vA + 4 * (k & 1)
            for r in range(4):
                a(f'v_perm_b32 v{base+r}, v{src+k//2}, v{src+k//2}, v{vS+2*r+(k&1)}')
        perms(0)
        for k in range(n):
            if k + 1 < n: perms(k + 1)
            if waits[k] is not None:
                a(f's_waitcnt vmcnt({waits[k]})')
            elif k + 1 == n:
                a('s_nop 0')
            base = vA + 4 * (k & 1)
            c = '0' if k == 0 else f'v[{acc}:{acc+3}]'
            a(f'v_mfma_f32_16x16x32_bf16 v[{acc}:{acc+3}], v[{base}:{base+3}], v[{wregs+4*k}:{wregs+4*k+3}], {c}')
    def halves(R):
        a(f'''s_nop 0
        v_permlane32_swap_b32 v{R}, v{R+1}
        v_permlane32_swap_b32 v{R+2}, v{R+3}
        s_nop 1
        v_add_f32 v{R}, v{R}, v{R+1}
        v_add_f32 v{R+2}, v{R+2}, v{R+3}
        v_cvt_pk_bf16_f32 v{R}, v{R}, v{R+2}''')

    XR, SEL, AT, WQ, GU, AQ = 8, 16, 24, 32, 96, 160
    VT, VFF, VC = 164, 6, 94
    stamp(0)
    a(f'''s_cmp_ge_u32 s2, 256
    s_cbranch_scc1 L_exit
    s_load_dwordx8 s[32:39], s[0:1], 0
    s_load_dwordx8 s[40:47], s[0:1], 32
    s_load_dwordx8 s[48:55], s[0:1], 64
    s_load_dwordx2 s[56:57], s[0:1], 96
    v_lshrrev_b32 v1, 6, v0
    v_and_b32 v0, 63, v0
    s_lshr_b32 s4, s2, 3             ; head
    v_readfirstlane_b32 s3, v1       ; wave
    s_and_b32 s5, s2, 7              ; j
    v_lshrrev_b32 v2, 4, v0          ; g
    v_and_b32 v3, 15, v0             ; c
    v_mov_b32 v4, 0
    s_mov_b64 s[58:59], -1
    s_cmp_eq_u32 s3, 5
    s_cbranch_scc1 L_B
    s_cmp_lg_u32 s3, 0
    s_cbranch_scc1 L_S
    ; ---------------- A wave ----------------
    s_setprio 3
    v_mov_b32 v5, 0
    v_mov_b32 v6, 0
    v_mov_b32 v7, 0
    ds_write_b128 v4, v[4:7] offset:0
    ds_write_b32 v4, v4 offset:{L_EP}
    v_lshrrev_b32 v8, 3, v3
    v_lshlrev_b32 v8, 10, v8
    v_lshl_add_u32 v24, v2, 5, v8    ; x: b*1024 + g*32
    v_lshlrev_b32 v9, 17, v2
    v_lshl_add_u32 v1, v3, 4, v9
    s_lshl_b32 s12, s5, 7
    s_lshl_b32 s13, s5, 19
    s_lshl_b32 s15, s4, 8
    s_add_u32 s13, s13, s15
    s_movk_i32 s16, 0x2000
    s_mov_b32 s62, {1<<22}
    s_mov_b32 s63, 0x20000
    s_mov_b32 s66, 2048
    s_mov_b32 s67, 0x20000
    s_waitcnt lgkmcnt(0)
    s_mov_b64 s[60:61], s[38:39]
    s_mov_b64 s[64:65], s[32:33]
    buffer_load_dwordx4 v[8:11], v24, s[64:67], s12 offen
    buffer_load_dwordx4 v[12:15], v24, s[64:67], s12 offen offset:16''')
    for n in range(16):
        a(f'buffer_load_dwordx4 v[{WQ+4*n}:{WQ+4*n+3}], v1, s[60:63], s13 offen {nt}')
        if n < 15: a('s_add_u32 s13, s13, s16')
    a('s_load_dword s6, s[56:57], 0     ; epoch')
    a('s_barrier')
    srd(68, 56, WS_SIZE)
    selectors(SEL, 24)
    a(f'''v_lshlrev_b32 v5, 4, v0
    s_lshl_b32 s15, s2, 10
    s_add_u32 s15, s15, {WS_QP}
    v_and_b32 v160, 7, v3
    s_cmp_eq_u32 s4, 21
    s_cselect_b32 s14, 3, 7
    v_and_b32 v160, s14, v160
    v_lshlrev_b32 v160, 4, v160
    s_mov_b32 s14, {16*2752}
    v_mad_u32_u24 v160, v2, s14, v160
    s_mul_i32 s14, s5, {64*2752}
    s_lshl_b32 s16, s4, 7
    s_add_u32 s14, s14, s16
    v_add_u32 v160, s14, v160
    v_mov_b32 v161, 0
    v_cmp_gt_u32 vcc, 8, v3
    v_mov_b32 v158, s46
    v_mov_b32 v159, s47
    v_mov_b32 v162, s44
    v_mov_b32 v163, s45
    v_cndmask_b32 v158, v158, v162, vcc
    v_cndmask_b32 v159, v159, v163, vcc
    v_lshl_add_u64 v[158:159], v[160:161], 0, v[158:159]
    s_mov_b32 s16, {2*2752}
    s_mov_b32 s17, 0
    s_cmp_lt_u32 s4, 22
    s_cselect_b64 vcc, -1, 0
    v_mov_b32 v160, 1
    s_waitcnt lgkmcnt(0)
    v_mov_b32 v161, s6
    ds_write_b64 v4, v[160:161] offset:{L_EP}''')
    tag_compute()
    a(f'''v_mov_b32 v{VT}, s7
    v_lshrrev_b32 v{VT+1}, 8, v{VT}
    v_lshrrev_b32 v{VT+2}, 16, v{VT}
    v_lshrrev_b32 v{VT+3}, 24, v{VT}
    v_mov_b32 v{VFF}, 0xff
    s_waitcnt vmcnt(16) lgkmcnt(0)''')
    gemv(16, XR, WQ, AQ, SEL, AT, [15 - k for k in range(16)])
    a(f'''v_mov_b32 v{VC}, 0x0c0c0400
    v_mov_b32 v{VC+1}, 0x04000c0c
    s_lshl_b32 s14, s4, 13
    s_lshr_b32 s18, s5, 2
    s_lshl_b32 s18, s18, 9
    s_add_u32 s14, s14, s18
    s_add_u32 s14, s14, {WS_QP}
    s_add_u32 s18, s56, s14''')
    tag_apply(AQ, VT, VFF)
    a(f'buffer_store_dwordx4 v[{AQ}:{AQ+3}], v5, s[68:71], s15 offen sc1')
    stamp(1)
    a('s_addc_u32 s19, s57, 0')
    a('s_cbranch_vccz L_A_nogu1')
    for kk in range(16):
        off = '' if kk % 2 == 0 else ' offset:2752'
        a(f'global_load_dwordx4 v[{GU+4*kk}:{GU+4*kk+3}], v[158:159], off{off} {nt}')
        if kk % 2 == 1 and kk < 15:
            a('v_lshl_add_u64 v[158:159], v[158:159], 0, s[16:17]')
    a('L_A_nogu1:')
    a(f'''s_lshr_b32 s9, s7, 24
    s_mov_b32 s11, {LIM_G}
    v_lshrrev_b32 v39, 5, v0
    v_and_b32 v37, 31, v0
    v_lshlrev_b32 v36, 4, v37
    v_lshl_add_u32 v36, v39, 10, v36
    s_add_u32 s16, s14, 4096
    v_lshlrev_b32 v37, 4, v3
    v_and_b32 v38, 1, v2
    v_lshl_add_u32 v37, v38, 3, v37
    v_lshl_add_u32 v37, v39, 1, v37
    v_and_b32 v38, 1, v0
    v_lshlrev_b32 v38, 7, v38
    v_bfe_u32 v39, v0, 2, 1
    v_lshl_add_u32 v38, v39, 6, v38
    v_bfe_u32 v39, v0, 1, 1
    v_lshl_add_u32 v38, v39, 5, v38
    v_lshrrev_b32 v39, 3, v0
    v_lshl_add_u32 v38, v39, 2, v38
    v_mov_b32 v39, 1
    s_lshl_b32 s15, s2, 10
    s_add_u32 s15, s15, {WS_GU}
    s_lshl_b32 s20, s5, 10
    s_add_u32 s20, s20, 508''')
    a('L_A_s0:')
    a('''s_load_dword s21, s[18:19], s20 glc
    s_sub_u32 s11, s11, 1
    s_cbranch_scc1 L_A_spd
    s_waitcnt lgkmcnt(0)
    s_xor_b32 s21, s21, s9
    s_and_b32 s21, s21, 0xff
    s_cbranch_scc1 L_A_s0''')
    a('L_A_sp:')
    for p in range(8):
        a(f's_load_dword s{20+p}, s[18:19], {p*1024+508} glc')
    a('''s_sub_u32 s11, s11, 1
    s_cbranch_scc1 L_A_spd
    s_waitcnt lgkmcnt(0)''')
    for p in range(8):
        a(f's_xor_b32 s{20+p}, s{20+p}, s9')
    for p in range(1, 8):
        a(f's_or_b32 s20, s20, s{20+p}')
    a('''s_and_b32 s20, s20, 0xff
    s_cbranch_scc1 L_A_sp''')
    a('L_A_spd:')
    stamp(2)
    QG = 40
    qloads = [f'buffer_load_dwordx4 v[{QG+4*k}:{QG+4*k+3}], v36, s[68:71], s{14 if k < 2 else 16} offen offset:{(k&1)*2048} sc1' for k in range(4)]
    for l in qloads: a(l)
    a('s_cbranch_vccz L_A_q')
    gemv(16, XR, GU, 32, SEL, AT, [4 + 15 - k for k in range(16)])
    a('L_A_q:')
    a('s_waitcnt vmcnt(0)')
    a('s_mov_b64 s[28:29], vcc')
    gather_check(qloads, [QG + 4 * k for k in range(4)], VC, 56)
    for k in range(1, 4):
        for r in range(4):
            a(f'v_add_f32 v{QG+r}, v{QG+r}, v{QG+4*k+r}')
    halves(QG)
    a(f'''s_waitcnt lgkmcnt(0)
    ds_write_b16 v37, v{QG} offset:{L_Q}
    ds_write_b16_d16_hi v37, v{QG} offset:{L_Q+4}
    ds_write_b32 v4, v39 offset:{L_QFLAG}
    s_cmp_eq_u64 s[28:29], 0
    s_cbranch_scc1 L_A_nogu3''')
    for r in range(4):
        a(f'ds_bpermute_b32 v{40+r}, v38, v{32+r}')
    a('s_waitcnt lgkmcnt(0)')
    tag_apply(40, VT, VFF)
    a('buffer_store_dwordx4 v[40:43], v5, s[68:71], s15 offen sc1')
    a('L_A_nogu3:')
    stamp(3)
    lds_poll(L_SCNT, 4, 36)
    stamp(4)
    a(f'''ds_read_b128 v[44:47], v4 offset:{L_ST}
    ds_read_b128 v[56:59], v4 offset:{L_ST+16}
    s_mov_b32 s16, {LOG2E}
    v_lshlrev_b32 v38, 4, v0
    s_lshl_b32 s15, s2, 10
    s_add_u32 s15, s15, {WS_OP}
    s_waitcnt lgkmcnt(0)
    v_max3_f32 v48, v44, v46, v56
    v_max_f32 v48, v48, v58
    v_sub_f32 v52, v44, v48
    v_sub_f32 v53, v46, v48
    v_sub_f32 v54, v56, v48
    v_sub_f32 v55, v58, v48
    v_mul_f32 v52, s16, v52
    v_mul_f32 v53, s16, v53
    v_mul_f32 v54, s16, v54
    v_mul_f32 v55, s16, v55
    v_exp_f32 v52, v52
    v_exp_f32 v53, v53
    v_exp_f32 v54, v54
    v_exp_f32 v55, v55
    s_nop 0
    v_mul_f32 v49, v52, v45
    v_fma_f32 v49, v53, v47, v49
    v_fma_f32 v49, v54, v57, v49
    v_fma_f32 v49, v55, v59, v49    ; L
    v_mov_b32 v50, 0
    v_mov_b32 v51, 0''')
    tag_apply(48, VT, VFF)
    a(f'''s_add_u32 s18, s56, s15
    s_addc_u32 s19, s57, 0
    v_readfirstlane_b32 s20, v48
    v_readfirstlane_b32 s21, v49
    v_readfirstlane_b32 s22, v50
    v_readfirstlane_b32 s23, v51
    s_mov_b32 exec_hi, 0
    s_nop 3
    s_atomic_swap_x2 s[20:21], s[18:19], 512
    s_atomic_swap_x2 s[22:23], s[18:19], 520
    s_waitcnt lgkmcnt(0)''')
    stamp(5)
    if stamps: a('s_waitcnt lgkmcnt(0)')
    oreads = [f'ds_read_b128 v[{60+4*w}:{63+4*w}], v38 offset:{L_O+512*w}' for w in range(4)]
    lds_poll(L_OCNT, 4, 36, extra=oreads)
    a('L_A_comb:')
    for w in range(4):
        a(f's_waitcnt lgkmcnt({3-w})')
        for r in range(4):
            if w == 0: a(f'v_mul_f32 v{60+r}, v52, v{60+r}')
            else: a(f'v_fma_f32 v{60+r}, v{52+w}, v{60+4*w+r}, v{60+r}')
    tag_apply(60, VT, VFF)
    a('s_cbranch_execz L_B_h')
    a('buffer_store_dwordx4 v[60:63], v38, s[68:71], s15 offen sc1')
    stamp(6)
    finish(7)

    KR, VR, SC = 32, 96, 12
    QF, MK, ACC = 28, 8, 160
    a('L_S:')
    a(f'''s_lshr_b32 s12, s5, 2
    s_lshl_b32 s12, s12, 5
    s_add_u32 s12, s12, s4
    s_lshl_b32 s12, s12, 4
    s_and_b32 s13, s5, 3
    s_add_u32 s12, s12, s13
    s_lshl_b32 s12, s12, 6
    s_add_u32 s12, s12, s3
    s_lshl_b32 s12, s12, 10
    s_add_u32 s12, s12, {786432 - 1024}
    s_sub_u32 s14, s3, 1                 ; w
    v_lshlrev_b32 v1, 4, v0
    s_mov_b32 s62, {0x10000 - 3072}
    s_mov_b32 s63, 0x20000
    s_mov_b32 s66, {0x10000 - 3072}
    s_mov_b32 s67, 0x20000
    s_mov_b64 vcc, 0
    s_lshl_b32 s13, s2, 12
    s_and_b32 s13, s13, 0xffff
    s_waitcnt lgkmcnt(0)
    s_add_u32 s60, s34, s12
    s_addc_u32 s61, s35, 0
    s_add_u32 s64, s36, s12
    s_addc_u32 s65, s37, 0
    s_mov_b32 s38, s13
    s_barrier''')
    for n in range(32):
        if n >= win and n < n1:
            L = a.label('Lw')
            a(f'''s_cbranch_vccnz {L}
            ds_read_b32 v5, v4 offset:{L_QFLAG}
            s_waitcnt vmcnt({win-1}) lgkmcnt(0)
            v_cmp_ne_u32 vcc, 0, v5''')
            a(f'{L}:')
        sr, R, i = (60, KR, n) if n < 16 else (64, VR, n - 16)
        a(f'buffer_load_dwordx4 v[{R+4*i}:{R+4*i+3}], v1, s[{sr}:{sr+3}], s{38+i} offen {nt}')
        if n < 15:
            a(f's_add_u32 s{39+i}, s{38+i}, 4096')
            a(f's_and_b32 s{39+i}, s{39+i}, 0xffff')
    a(f'''v_and_b32 v5, 1, v0
    v_cmp_eq_u32 vcc, 1, v5
    v_mov_b32 v6, 0xffff
    v_mov_b32 v7, 0xffff0000
    v_cndmask_b32 v6, v6, v7, vcc
    v_lshrrev_b32 v5, 1, v3''')
    for r in range(4):
        a(f'''v_cmp_eq_u32 vcc, {r}, v5
        s_nop 1
        v_cndmask_b32 v{MK+r}, 0, v6, vcc''')
    stamp(1)
    lds_poll(L_QFLAG, 1, 5)
    a('s_waitcnt vmcnt(16)')
    a('L_S_qk:')
    a(f'''v_lshlrev_b32 v5, 4, v3
    ds_read_b128 v[{QF}:{QF+3}], v5 offset:{L_Q}
    s_mov_b32 s15, {SCALE}
    s_mov_b32 s16, {LOG2E}
    s_mov_b32 s17, 0xffff0000
    s_waitcnt lgkmcnt(0)''')
    stamp(2)
    for r in range(4):
        for i in range(16):
            c = '0' if r == 0 else f'v{SC+i}'
            a(f'v_dot2_f32_bf16 v{SC+i}, v{KR+4*i+r}, v{QF+r}, {c}')
    T, U = KR, KR + 8
    for i in range(8):
        a(f'v_add_f32_dpp v{T+i}, v{SC+i}, v{SC+i} row_ror:8 row_mask:0xf bank_mask:0x3')
    for i in range(8):
        a(f'v_add_f32_dpp v{T+i}, v{SC+8+i}, v{SC+8+i} row_ror:8 row_mask:0xf bank_mask:0xc')
    for i in range(4):
        a(f'v_add_f32_dpp v{U+i}, v{T+i}, v{T+i} row_ror:12 row_mask:0xf bank_mask:0x5')
    for i in range(4):
        a(f'v_add_f32_dpp v{U+i}, v{T+4+i}, v{T+4+i} row_ror:4 row_mask:0xf bank_mask:0xa')
    a('v_and_b32 v5, 3, v0')
    for qp in ('[1,0,3,2]', '[2,3,0,1]'):
        for i in range(4):
            a(f'v_add_f32_dpp v{U+i}, v{U+i}, v{U+i} quad_perm:{qp} {DPPALL}')
    a(f'''v_cmp_eq_u32 vcc, 1, v5
    v_cmp_eq_u32 s[20:21], 2, v5
    v_cmp_eq_u32 s[22:23], 3, v5
    s_nop 0
    v_cndmask_b32 v{SC}, v{U}, v{U+1}, vcc
    v_cndmask_b32 v{SC}, v{SC}, v{U+2}, s[20:21]
    v_cndmask_b32 v{SC}, v{SC}, v{U+3}, s[22:23]
    v_cvt_pk_bf16_f32 v{SC}, v{SC}, v{SC}
    v_and_b32 v{SC}, s17, v{SC}
    v_mul_f32 v{SC}, s15, v{SC}
    v_cvt_pk_bf16_f32 v{SC}, v{SC}, v{SC}
    v_and_b32 v{SC}, s17, v{SC}
    s_nop 1
    v_max_f32_dpp v5, v{SC}, v{SC} row_ror:8 {DPPALL}''')
    for rot in (4, 2, 1):
        a('s_nop 1')
        a(f'v_max_f32_dpp v5, v5, v5 row_ror:{rot} {DPPALL}')
    a(f'''v_mov_b32 v6, v5
    s_nop 1
    v_permlane32_swap_b32 v5, v6
    s_nop 1
    v_max_f32 v5, v5, v6
    v_mov_b32 v6, v5
    s_nop 1
    v_permlane16_swap_b32 v5, v6
    s_nop 1
    v_max_f32 v5, v5, v6
    v_sub_f32 v{SC}, v{SC}, v5
    v_mul_f32 v{SC}, s16, v{SC}
    v_exp_f32 v{SC}, v{SC}
    s_nop 0
    v_cvt_pk_bf16_f32 v{SC+1}, v{SC}, v{SC}
    s_nop 0
    v_add_f32_dpp v7, v{SC}, v{SC} row_ror:8 {DPPALL}''')
    rots = [4, 2, 1]
    for i in range(16):
        for r in range(4):
            a(f'v_and_b32_dpp v{KR+4*i+r}, v{SC+1}, v{MK+r} row_newbcast:{i} {DPPALL}')
        if i < 3: a(f'v_add_f32_dpp v7, v7, v7 row_ror:{rots[i]} {DPPALL}')
        if i == 3: a('v_mov_b32 v6, v7')
        if i == 4: a('v_permlane32_swap_b32 v6, v7')
        if i == 5:
            a('v_add_f32 v7, v6, v7')
            a('v_mov_b32 v6, v7')
        if i == 6: a('v_permlane16_swap_b32 v6, v7')
        if i == 7:
            a('v_add_f32 v7, v6, v7')
            a('v_mov_b32 v6, v5')
            a('s_lshl_b32 s13, s14, 3')
            a(f'v_mov_b32 v{SC+2}, s13')
            a(f'v_mov_b32 v{SC+3}, 1')
        if i == 8:
            a(f'''s_and_b64 exec, s[58:59], 1
            ds_write_b64 v{SC+2}, v[6:7] offset:{L_ST}
            ds_add_u32 v4, v{SC+3} offset:{L_SCNT}
            s_mov_b64 exec, s[58:59]''')
    a(f'''v_lshlrev_b32 v6, 5, v3
    v_lshl_add_u32 v6, v2, 4, v6
    s_lshl_b32 s13, s14, 9
    v_add_u32 v6, s13, v6''')
    stamp(3)
    for i in range(16):
        a(f's_waitcnt vmcnt({15-i})')
        c = '0' if i == 0 else f'v[{ACC}:{ACC+3}]'
        a(f'v_mfma_f32_16x16x32_bf16 v[{ACC}:{ACC+3}], v[{KR+4*i}:{KR+4*i+3}], v[{VR+4*i}:{VR+4*i+3}], {c}')
        if i == vsig:
            a(f'''s_and_b64 exec, s[58:59], 1
            ds_add_u32 v4, v{SC+3} offset:{L_VDONE}
            s_mov_b64 exec, s[58:59]''')
    stamp(4)
    a(f'''s_cbranch_execz L_B_dry4
    s_mov_b32 exec_hi, 0
    s_nop 5
    ds_write_b128 v6, v[{ACC}:{ACC+3}] offset:{L_O}
    s_mov_b64 exec, 1
    ds_add_u32 v4, v{SC+3} offset:{L_OCNT}''')
    finish(5)

    SEL, AT, WD, WO = 16, 24, 32, 56
    OG, HS = 120, 132
    ACA, ACF, SG = 136, 140, 136
    VT, VFF, VC = 144, 148, 149
    VG, VOG = 151, 152
    T0 = 153
    PB, SCL = T0 + 12, T0 + 13
    a('L_B:')
    a(f'''v_lshlrev_b32 v1, 4, v0
    s_getpc_b64 s[20:21]
    L_pc:
    s_sub_u32 s20, s20, L_pc-{KN}
    s_subb_u32 s21, s21, 0
    s_and_b32 s22, s4, 15
    s_lshl_b32 s22, s22, 10
    v_add_u32 v5, s22, v1
    v_min_u32 v5, L_exit-{KN}-16, v5
    v_and_b32 v5, 0xfffffff0, v5
    global_load_dwordx4 v[44:47], v5, s[20:21]
    s_barrier
    s_waitcnt lgkmcnt(0)
    s_lshr_b32 s13, s2, 2
    s_lshl_b32 s13, s13, 7
    s_add_u32 s13, s13, {WS_C2}
    s_add_u32 s100, s56, s13
    s_addc_u32 s101, s57, 0                ; s[100:101] = &C2[r]
    s_load_dword s99, s[100:101], 0''')
    srd(60, 32, 2048)
    srd(64, 50, 1024)
    srd(68, 56, WS_SIZE)
    srd(72, 52, 2048)
    a(f'''buffer_load_dwordx4 v[56:59], v1, s[60:63], 0 offen
    buffer_load_dwordx4 v[60:63], v1, s[60:63], 0 offen offset:1024
    buffer_load_dwordx4 v[64:67], v1, s[64:67], 0 offen''')
    selectors(SEL, 24)
    a(f'''v_lshlrev_b32 v8, 10, v0
    v_and_b32 v14, 3, v0
    v_bfe_u32 v10, v0, 3, 1
    v_lshlrev_b32 v9, 2, v10
    v_bfe_u32 v10, v0, 2, 1
    v_add_u32 v9, v9, v10
    v_lshlrev_b32 v{PB}, 2, v9
    v_lshlrev_b32 v9, 10, v9
    v_lshl_add_u32 v9, v2, 6, v9
    v_lshl_add_u32 v9, v14, 4, v9
    s_lshr_b32 s12, s5, 2
    s_lshl_b32 s19, s12, 8
    v_add_u32 v9, s19, v9
    v_bfe_u32 v10, v0, 3, 1
    v_lshlrev_b32 v10, 6, v10
    v_lshl_add_u32 v10, v2, 4, v10
    v_lshrrev_b32 v11, 2, v3
    v_lshl_add_u32 v11, v2, 2, v11
    v_lshlrev_b32 v11, 14, v11
    v_lshl_add_u32 v11, v14, 4, v11
    v_lshlrev_b32 v12, 4, v0
    v_and_b32 v13, 1, v2
    v_lshlrev_b32 v13, 2, v13
    v_lshl_add_u32 v13, v14, 4, v13
    v_lshrrev_b32 v14, 1, v2
    v_lshl_add_u32 v13, v14, 1, v13''')
    dry_enter('L_A_comb')
    a('L_B_dry3:')
    dry_leave()
    lds_poll(L_EP, 1, 7)
    a(f'''ds_read_b32 v7, v4 offset:{L_EP+4}
    s_mov_b32 s17, 0xffff0000
    s_waitcnt lgkmcnt(0)
    v_readfirstlane_b32 s6, v7''')
    tag_compute()
    a(f'''v_mov_b32 v{VT}, s7
    v_lshrrev_b32 v{VT+1}, 8, v{VT}
    v_lshrrev_b32 v{VT+2}, 16, v{VT}
    v_lshrrev_b32 v{VT+3}, 24, v{VT}
    v_mov_b32 v{VFF}, 0xff
    v_mov_b32 v{VC}, 0x0c0c0400
    v_mov_b32 v{VC+1}, 0x04000c0c
    s_waitcnt vmcnt(0)''')
    for d in range(4):
        a(f'v_lshlrev_b32 v{68+2*d}, 16, v{64+d}')
        a(f'v_and_b32 v{69+2*d}, s17, v{64+d}')
    for b in range(2):
        for d in range(4):
            a(f'v_lshlrev_b32 v{76+2*d}, 16, v{56+4*b+d}')
            a(f'v_and_b32 v{77+2*d}, s17, v{56+4*b+d}')
        for e in range(8):
            a(f'v_mul_f32 v{76+e}, v{76+e}, v{68+e}')
        for d in range(4):
            a(f'v_cvt_pk_bf16_f32 v{84+d}, v{76+2*d}, v{77+2*d}')
        for d in range(4):
            a(f'v_lshlrev_b32 v{76+2*d}, 16, v{84+d}')
            a(f'v_and_b32 v{77+2*d}, s17, v{84+d}')
        for stp in (1, 2):
            for e in range(0, 8, 2 * stp):
                a(f'v_add_f32 v{76+e}, v{76+e}, v{76+e+stp}')
        a(f'v_add_f32 v{88+b}, v76, v80')
    a(f'''s_nop 1
    v_permlane32_swap_b32 v88, v89
    s_nop 1
    v_add_f32 v88, v88, v89
    v_mov_b32 v89, v88
    s_nop 1
    v_permlane16_swap_b32 v88, v89
    s_nop 1
    v_add_f32 v88, v88, v89''')
    for rot in (8, 4, 2, 1):
        a('s_nop 1')
        a(f'v_add_f32_dpp v88, v88, v88 row_ror:{rot} {DPPALL}')
    a(f'''v_cvt_pk_bf16_f32 v88, v88, v88
    s_mov_b32 s16, {LOG2E}
    v_and_b32 v88, s17, v88
    v_mul_f32 v88, s16, v88
    v_sub_f32 v88, 0, v88
    v_exp_f32 v88, v88
    s_nop 0
    v_add_f32 v88, 1.0, v88
    v_rcp_f32 v88, v88
    s_nop 0
    v_cvt_pk_bf16_f32 v88, v88, v88
    v_and_b32 v{VG}, s17, v88
    v_sub_f32 v88, 1.0, v{VG}
    v_cvt_pk_bf16_f32 v88, v88, v88
    v_and_b32 v{VOG}, s17, v88
    ds_read_b32 v7, v4 offset:{L_QFLAG}
    s_waitcnt lgkmcnt(0)
    v_readfirstlane_b32 s10, v7
    s_cmp_lg_u32 s10, 0
    s_cbranch_scc1 L_B_dry4
    s_mov_b32 s14, 0''')
    dry_enter('L_S_qk')
    a('L_B_dry4:')
    dry_leave()
    a(f'''s_mov_b32 s16, {LOG2E}
    s_mov_b32 s17, 0xffff0000
    s_and_b32 s13, s5, 3
    s_lshr_b32 s23, s2, 2
    s_mul_i32 s28, s23, 43
    s_lshr_b32 s29, s28, 3
    s_add_u32 s28, s28, 43
    s_lshr_b32 s28, s28, 3
    s_sub_u32 s28, s28, s29
    s_lshl_b32 s15, s29, 12
    s_lshl_b32 s18, s13, 8
    s_add_u32 s15, s15, s18
    s_lshl_b32 s14, s23, 16
    s_add_u32 s14, s14, s18
    s_lshl_b32 s19, s4, 13
    s_add_u32 s19, s19, {WS_OP}
    s_lshl_b32 s20, s23, 6
    s_lshl_b32 s18, s13, 12
    s_add_u32 s20, s20, s18
    s_add_u32 s20, s20, {WS_FP}
    s_lshl_b32 s22, s23, 12
    s_add_u32 s22, s22, {WS_FP}        ; gather: r*4096
    s_and_b32 s21, s23, 3
    s_bfe_u32 s24, s23, 0x10005
    s_lshl_b32 s24, s24, 10
    s_lshl_b32 s21, s21, 8
    s_add_u32 s24, s24, s21
    s_bfe_u32 s21, s23, 0x20002
    s_lshl_b32 s21, s21, 6
    s_add_u32 s24, s24, s21
    s_bfe_u32 s21, s23, 0x10004
    s_lshl_b32 s21, s21, 3
    s_add_u32 s24, s24, s21
    s_xor_b32 s21, s4, s2
    s_and_b32 s21, s21, 3
    s_lshl_b32 s30, s13, 7
    s_add_u32 s30, s30, {WS_C2}''')
    srd(60, 48, 1376 * 1024)
    srd(64, 40, 1 << 22)
    QG = 120
    a(f'''v_lshlrev_b32 v5, 4, v3
    v_lshl_add_u32 v6, v2, 10, v5
    v_lshl_add_u32 v5, v2, 14, v5
    v_bfe_u32 v14, v0, 2, 3        ; unit
    v_add_u32 v15, s29, v14
    v_lshrrev_b32 v1, 4, v15
    v_lshlrev_b32 v1, 13, v1
    v_and_b32 v15, 15, v15
    v_lshl_add_u32 v1, v15, 6, v1
    v_and_b32 v15, 3, v0
    v_lshl_add_u32 v1, v15, 4, v1
    v_lshrrev_b32 v7, 5, v0
    v_lshl_add_u32 v1, v7, 10, v1
    v_and_b32 v15, 1, v0
    v_lshlrev_b32 v15, 6, v15
    v_lshl_add_u32 v15, v7, 4, v15
    v_lshl_add_u32 v15, v14, 1, v15
    s_mov_b32 s97, {WS_GU}
    s_mov_b32 s98, {WS_GU + 4096}
    v_cmp_gt_u32 s[8:9], s28, v14''')
    for r in range(16):
        a(f'v_mov_b32 v{QG+r}, 0')
    stamp(1)
    gloads = [f'buffer_load_dwordx4 v[{QG+4*k}:{QG+4*k+3}], v1, s[68:71], s{97 if k < 2 else 98} offen offset:{(k&1)*2048} sc1' for k in range(4)]
    sload = [f'buffer_load_dwordx4 v[{SG}:{SG+3}], v8, s[68:71], s19 offen offset:512 sc1']
    a('s_setprio 3')
    lds_poll(L_VDONE, 4, 7)
    stamp(2)
    a('s_mov_b64 exec, s[8:9]')
    for l in gloads: a(l)
    a('s_mov_b64 exec, 0xff')
    for l in sload: a(l)
    a('s_mov_b64 exec, -1')
    for k in range(6):
        a(f's_add_u32 s18, s15, {k*4096}')
        a(f'buffer_load_dwordx4 v[{WD+4*k}:{WD+4*k+3}], v6, s[60:63], s18 offen {nt}')
    for k in range(16):
        if k % 4 == 0: a(f's_add_u32 s18, s14, {k*1024}')
        a(f'buffer_load_dwordx4 v[{WO+4*k}:{WO+4*k+3}], v5, s[64:67], s18 offen offset:{(k%4)*1024} {nt}')
    a('s_waitcnt vmcnt(23)')
    a('s_mov_b64 exec, s[8:9]')
    a('L_B_h:')
    gather_check(gloads, [QG + 4 * k for k in range(4)], VC, T0)
    for k in range(1, 4):
        for r in range(4):
            a(f'v_add_f32 v{QG+r}, v{QG+r}, v{QG+4*k+r}')
    halves(QG)
    a(f'''v_lshlrev_b32 v{QG+4}, 16, v{QG}
    v_and_b32 v{QG+5}, s17, v{QG}
    s_nop 1
    v_mul_f32_dpp v{QG+6}, v{QG+4}, v{QG+4} quad_perm:[2,3,0,1] {DPPALL}
    v_mul_f32_dpp v{QG+7}, v{QG+5}, v{QG+5} quad_perm:[2,3,0,1] {DPPALL}
    v_cvt_pk_bf16_f32 v{QG}, v{QG+6}, v{QG+7}
    ds_write_b16 v15, v{QG} offset:{L_H}
    ds_write_b16_d16_hi v15, v{QG} offset:{L_H+32}
    ds_read_b128 v[{HS}:{HS+3}], v10 offset:{L_H}
    v_mov_b32 v14, 1
    s_waitcnt lgkmcnt(0)
    v_lshlrev_b32 v15, 9, v0
    s_waitcnt vmcnt(22)
    s_and_b64 exec, s[58:59], 0xff''')
    gather_check(sload, [SG], VC, T0)
    oloads = [f'buffer_load_dwordx4 v[{OG}:{OG+3}], v9, s[68:71], s19 offen sc1',
              f'buffer_load_dwordx4 v[{OG+4}:{OG+7}], v9, s[68:71], s19 offen offset:2048 sc1']
    mem(oloads)
    m, l = SG, SG + 1
    a(f'''v_and_b32 v{m}, s17, v{m}
    s_nop 1
    v_max_f32_dpp v{T0}, v{m}, v{m} quad_perm:[1,0,3,2] {DPPALL}
    s_nop 1
    v_max_f32_dpp v{T0}, v{T0}, v{T0} quad_perm:[2,3,0,1] {DPPALL}
    v_sub_f32 v{T0}, v{m}, v{T0}
    v_mul_f32 v{T0}, s16, v{T0}
    v_exp_f32 v{T0}, v{T0}
    s_nop 0
    v_mul_f32 v{T0+1}, v{T0}, v{l}
    s_nop 1
    v_add_f32_dpp v{T0+1}, v{T0+1}, v{T0+1} quad_perm:[1,0,3,2] {DPPALL}
    s_nop 1
    v_add_f32_dpp v{T0+1}, v{T0+1}, v{T0+1} quad_perm:[2,3,0,1] {DPPALL}
    v_rcp_f32 v{T0+1}, v{T0+1}
    s_nop 0
    v_mul_f32 v{T0}, v{T0}, v{T0+1}
    ds_bpermute_b32 v{SCL}, v{PB}, v{T0}
    ds_bpermute_b32 v{SCL+1}, v{PB}, v{T0} offset:8''')
    stamp(3)
    gemv(6, HS, WD, ACF, SEL, AT, [18 + 5 - k for k in range(6)])
    a(f's_mov_b32 s11, {LIM_G}')
    a('s_waitcnt lgkmcnt(0)')
    a('s_nop 5')
    for r in range(4):
        a(f'v_mul_f32 v{ACF+r}, v{VOG}, v{ACF+r}')
    a('s_branch L_B_oc')
    a('L_B_ol:')
    for l in oloads: a(l)
    a('L_B_oc:')
    a('s_waitcnt vmcnt(0)')
    stamp(4)
    OS = 32
    for l in tag_check_lines([OG, OG + 4], VC, T0): a(l)
    for e in range(4): a(f'v_mul_f32 v{OS+e}, v{SCL}, v{OG+e}')
    for e in range(4): a(f'v_fma_f32 v{OS+e}, v{SCL+1}, v{OG+4+e}, v{OS+e}')
    a('''s_sub_u32 s11, s11, 1
    s_cbranch_scc1 L_B_od
    s_and_b64 exec, exec, vcc
    s_cbranch_scc1 L_B_ol''')
    a('L_B_od:')
    a('s_mov_b64 exec, s[58:59]')
    stamp(5)
    for e in range(4):
        a(f'v_add_f32_dpp v{OS+4+e}, v{OS+e}, v{OS+e} row_ror:12 row_mask:0xf bank_mask:0x5')
    for e in range(4):
        a(f'v_add_f32_dpp v{OS+4+e}, v{OS+e}, v{OS+e} row_ror:4 row_mask:0xf bank_mask:0xa')
    a(f'v_cvt_pk_bf16_f32 v{OS}, v{OS+4}, v{OS+5}')
    a(f'v_cvt_pk_bf16_f32 v{OS+1}, v{OS+6}, v{OS+7}')
    mem(['s_mov_b64 exec, 0xffff', 'buffer_atomic_add v14, v15, s[68:71], s30 offen', 's_mov_b64 exec, -1'])
    X = T0 + 2
    a('s_cmp_lg_u32 s21, 0')
    for u in range(4):
        for d in range(2):
            a(f'v_mov_b32_dpp v{X+2*u+d}, v{OS+d} quad_perm:[{u},{u},{u},{u}] {DPPALL}')
    gemv(16, X, WO, ACA, SEL, AT, [None] * 16)
    a(f's_mov_b32 s11, {LIM_H}')
    a('s_nop 6')
    for r in range(4):
        a(f'v_fma_f32 v{ACA+r}, v{VG}, v{ACA+r}, v{ACF+r}')
    tag_apply(ACA, VT, VFF)
    FG, FS = 32, 48
    floads = [f'buffer_load_dwordx4 v[{FG+4*k}:{FG+4*k+3}], v12, s[68:71], s22 offen offset:{1024*k} sc1' for k in range(4)]
    a('s_cbranch_execz L_B_fc')
    a(f'buffer_store_dwordx4 v[{ACA}:{ACA+3}], v11, s[68:71], s20 offen sc1')
    if stamps:
        a('s_memrealtime s[92:93]'); a('s_memrealtime s[94:95]')
    a('s_cbranch_scc1 L_B_end')
    a('L_B_hl:')
    a('''s_load_dword s10, s[100:101], 0 glc
    s_sub_u32 s11, s11, 1
    s_cbranch_scc1 L_B_hd
    s_waitcnt lgkmcnt(0)
    s_sub_u32 s10, s10, s99
    s_cmp_lt_u32 s10, 64
    s_cbranch_scc1 L_B_hl''')
    a('L_B_hd:')
    a(f's_mov_b32 s11, {LIM_G}')
    a('L_B_fl:')
    for l in floads: a(l)
    a('s_waitcnt vmcnt(0)')
    a('L_B_fc:')
    for l in tag_check_lines([FG + 4 * k for k in range(4)], VC, T0): a(l)
    for r in range(4): a(f'v_add_f32 v{FS+r}, v{FG+r}, v{FG+4+r}')
    for r in range(4): a(f'v_add_f32 v{FS+4+r}, v{FG+8+r}, v{FG+12+r}')
    for r in range(4): a(f'v_add_f32 v{FS+r}, v{FS+r}, v{FS+4+r}')
    a('''s_sub_u32 s11, s11, 1
    s_cbranch_scc1 L_B_fd
    s_and_b64 exec, exec, vcc
    s_cbranch_scc1 L_B_fl''')
    a('L_B_fd:')
    a(f'''s_mov_b64 exec, s[58:59]
    v_permlane32_swap_b32 v{FS}, v{FS+1}
    v_permlane32_swap_b32 v{FS+2}, v{FS+3}
    s_nop 1
    v_add_f32 v{FS}, v{FS}, v{FS+1}
    v_add_f32 v{FS+2}, v{FS+2}, v{FS+3}
    s_nop 1
    v_permlane16_swap_b32 v{FS}, v{FS+2}
    s_nop 1
    v_add_f32 v{FS}, v{FS}, v{FS+2}''')
    for rot in (8, 4):
        a('s_nop 1')
        a(f'v_add_f32_dpp v{FS}, v{FS}, v{FS} row_ror:{rot} {DPPALL}')
    a(f'''v_cvt_pk_bf16_f32 v{FS}, v{FS}, v{FS}
    s_cbranch_execz L_B_dry3
    s_mov_b32 exec_lo, 0x000f000f
    s_mov_b32 exec_hi, 0x000f000f
    buffer_store_short v{FS}, v13, s[72:75], s24 offen sc1
    s_cmp_lg_u32 s2, 0
    s_cbranch_scc1 L_B_st
    s_add_u32 s6, s6, 1
    v_mov_b32 v5, s6
    s_mov_b64 exec, 1
    buffer_store_dword v5, v4, s[68:71], 0 offen sc1''')
    a('L_B_st:')
    stamp(7)
    a('L_B_end:')
    finish(8)
    for t in tail:
        for l in t: a(l)
    a('L_exit:')
    txt = kernel_file([(KN, 256, 384, LDS_BYTES)], [(KN, a.text(), 168, 102, 168)])
    txt = txt.replace('.amdgcn_target', DOC + '.amdgcn_target', 1)
    open(fname, 'w').write(txt)

if __name__ == '__main__':
    gen('f1.s'); gen('f1_st.s', stamps=True)
    gen('f2.s', vsig=4); gen('f3.s', n1=22); gen('f4.s', n1=30)
```

```python
import sys
from asmlib import *

WS_QP = 0x1000
WS_GU = 0x80000
WS_OP = 0xC0000
WS_FP = 0x100000
WS_C2 = 0x150000
WS_SIZE = 0x200000
STAMP_OFF = 128 << 20
L_QFLAG, L_VDONE, L_SCNT, L_OCNT, L_EP = 0, 4, 8, 12, 16
L_Q, L_H, L_ST, L_O = 64, 320, 448, 512
LDS_BYTES = 512 + 2048
SCALE = 0x3DB504F3
LOG2E = 0x3FB8AA3B
DPPALL = 'row_mask:0xf bank_mask:0xf'
KN = NAME + '_kernel'

DOC = '''; ---------------------------------------------------------------------------------------------
; ---------------------------------------------------------------------------------------------
'''

def gen(fname, stamps=False, win=5, n1=26, vsig=8, LIM_LDS=400000, LIM_G=40000, LIM_H=300, sstat=False, untag=True):
    nt = 'nt'
    a = Asm()
    tail = []
    def stamp(i):
        if stamps: a(f's_memrealtime s[{80+2*i}:{81+2*i}]')
    def srd(base, ptr, size):
        a(f'''s_mov_b64 s[{base}:{base+1}], s[{ptr}:{ptr+1}]
        s_mov_b32 s{base+2}, {size}
        s_mov_b32 s{base+3}, 0x20000''')
    def finish(nst):
        if stamps:
            a('s_mov_b64 exec, 1')
            a('s_waitcnt lgkmcnt(0)')
            srd(76, 56, 0x10000000)
            a(f'''s_mul_i32 s10, s2, 6
            s_add_u32 s10, s10, s3
            s_lshl_b32 s10, s10, 5
            s_add_u32 s10, s10, {STAMP_OFF}
            v_mov_b32 v1, 0''')
            for i in range(8):
                a(f'v_mov_b32 v{8+i}, s{80+2*min(i, nst-1)}')
            a('buffer_store_dwordx4 v[8:11], v1, s[76:79], s10 offen')
            a('buffer_store_dwordx4 v[12:15], v1, s[76:79], s10 offen offset:16')
        a('s_endpgm')
    def dry_enter(label):
        a(f'''s_mov_b64 s[58:59], 0
        s_mov_b64 exec, 0
        s_branch {label}''')
    def dry_leave():
        a('''s_mov_b64 s[58:59], -1
        s_mov_b64 exec, -1''')
    def mem(lines):
        L = a.label('Lm')
        a(f's_cbranch_execz {L}')
        for l in lines: a(l)
        a(f'{L}:')
    def lds_poll(off, target, vtmp, extra=()):
        L = a.label('Lp'); D = a.label('Lpd')
        a(f's_mov_b32 s11, {LIM_LDS}')
        a(f'{L}:')
        a(f'ds_read_b32 v{vtmp}, v4 offset:{off}')
        for l in extra: a(l)
        a(f'''s_sub_u32 s11, s11, 1
        s_cbranch_scc1 {D}
        s_waitcnt lgkmcnt({len(extra)})
        v_readfirstlane_b32 s10, v{vtmp}
        s_cmp_lt_u32 s10, {target}
        s_cbranch_scc1 {L}''')
        a(f'{D}:')
    def tag_compute():
        a('''s_mul_i32 s7, s6, 0x9E3779B1
        s_add_u32 s7, s7, 0x7F4A7C15
        s_lshr_b32 s8, s7, 15
        s_xor_b32 s7, s7, s8
        s_mul_i32 s7, s7, 0x85EBCA6B
        s_lshr_b32 s8, s7, 13
        s_xor_b32 s7, s7, s8''')
    def tag_apply(r, vT, vFF):
        for i in range(4):
            a(f'v_bfi_b32 v{r+i}, v{vFF}, v{vT+i}, v{r+i}')
    def tag_check_lines(units, vC, t0):
        L = []
        for n, r in enumerate(units):
            L.append(f'v_perm_b32 v{t0+2*n}, v{r+1}, v{r}, v{vC}')
            L.append(f'v_perm_b32 v{t0+2*n+1}, v{r+3}, v{r+2}, v{vC+1}')
        for n, r in enumerate(units):
            L.append(f'v_or_b32 v{t0+2*n}, v{t0+2*n}, v{t0+2*n+1}')
            L.append(f'v_xor_b32 v{t0+2*n}, s7, v{t0+2*n}')
        for n in range(1, len(units)):
            L.append(f'v_or_b32 v{t0}, v{t0}, v{t0+2*n}')
        L.append(f'v_cmp_ne_u32 vcc, 0, v{t0}')
        return L
    def strip(regs):
        if untag:
            for r in regs: a(f'v_and_b32 v{r}, 0xffffff00, v{r}')
    def gather_check(loads, units, vC, t0):
        L = a.label('Lg'); C = a.label('Lgc')
        a(f's_mov_b32 s11, {LIM_G}')
        a(f'{C}:')
        for l in tag_check_lines(units, vC, t0): a(l)
        a('s_and_b64 exec, exec, vcc')
        a(f's_cbranch_scc1 {L}')
        a(f'{L}d:')
        a('s_mov_b64 exec, s[58:59]')
        tail.append([f'{L}:', 's_sub_u32 s11, s11, 1', f's_cbranch_scc1 {L}d'] + loads + ['s_waitcnt vmcnt(0)', f's_branch {C}'])
    def selectors(vS, t0):
        a(f'''v_and_b32 v{t0}, 1, v0
        v_cmp_eq_u32 vcc, 1, v{t0}
        v_mov_b32 v{t0+1}, 0x0c0c0100
        v_mov_b32 v{t0+2}, 0x01000c0c
        v_mov_b32 v{t0+3}, 0x0c0c0302
        v_mov_b32 v{t0+4}, 0x03020c0c
        v_cndmask_b32 v{t0+1}, v{t0+1}, v{t0+2}, vcc
        v_cndmask_b32 v{t0+3}, v{t0+3}, v{t0+4}, vcc
        v_bfe_u32 v{t0}, v0, 1, 2
        v_mov_b32 v{t0+2}, 0x0c0c0c0c''')
        for r in range(4):
            a(f'''v_cmp_eq_u32 vcc, {r}, v{t0}
            s_nop 1
            v_cndmask_b32 v{vS+2*r}, v{t0+2}, v{t0+1}, vcc
            v_cndmask_b32 v{vS+2*r+1}, v{t0+2}, v{t0+3}, vcc''')
    def gemv(n, src, wregs, acc, vS, vA, waits):
        def perms(k):
            base = vA + 4 * (k & 1)
            for r in range(4):
                a(f'v_perm_b32 v{base+r}, v{src+k//2}, v{src+k//2}, v{vS+2*r+(k&1)}')
        perms(0)
        for k in range(n):
            if k + 1 < n: perms(k + 1)
            if waits[k] is not None:
                a(f's_waitcnt vmcnt({waits[k]})')
            elif k + 1 == n:
                a('s_nop 0')
            base = vA + 4 * (k & 1)
            c = '0' if k == 0 else f'v[{acc}:{acc+3}]'
            a(f'v_mfma_f32_16x16x32_bf16 v[{acc}:{acc+3}], v[{base}:{base+3}], v[{wregs+4*k}:{wregs+4*k+3}], {c}')
    def halves(R):
        a(f'''s_nop 0
        v_permlane32_swap_b32 v{R}, v{R+1}
        v_permlane32_swap_b32 v{R+2}, v{R+3}
        s_nop 1
        v_add_f32 v{R}, v{R}, v{R+1}
        v_add_f32 v{R+2}, v{R+2}, v{R+3}
        v_cvt_pk_bf16_f32 v{R}, v{R}, v{R+2}''')

    XR, SEL, AT, WQ, GU, AQ = 8, 16, 24, 32, 96, 160
    VT, VFF, VC = 164, 6, 94
    stamp(0)
    a(f'''s_cmp_ge_u32 s2, 256
    s_cbranch_scc1 L_exit
    s_load_dwordx8 s[32:39], s[0:1], 0
    s_load_dwordx8 s[40:47], s[0:1], 32
    s_load_dwordx8 s[48:55], s[0:1], 64
    s_load_dwordx2 s[56:57], s[0:1], 96
    v_lshrrev_b32 v1, 6, v0
    v_and_b32 v0, 63, v0
    s_lshr_b32 s4, s2, 3             ; head
    v_readfirstlane_b32 s3, v1       ; wave
    s_and_b32 s5, s2, 7              ; j
    v_lshrrev_b32 v2, 4, v0          ; g
    v_and_b32 v3, 15, v0             ; c
    v_mov_b32 v4, 0
    s_mov_b64 s[58:59], -1
    s_cmp_eq_u32 s3, 5
    s_cbranch_scc1 L_B
    s_cmp_lg_u32 s3, 0
    s_cbranch_scc1 L_S
    ; ---------------- A wave ----------------
    s_setprio 3
    v_mov_b32 v5, 0
    v_mov_b32 v6, 0
    v_mov_b32 v7, 0
    ds_write_b128 v4, v[4:7] offset:0
    ds_write_b32 v4, v4 offset:{L_EP}
    v_lshrrev_b32 v8, 3, v3
    v_lshlrev_b32 v8, 10, v8
    v_lshl_add_u32 v24, v2, 5, v8    ; x: b*1024 + g*32
    v_lshlrev_b32 v9, 17, v2
    v_lshl_add_u32 v1, v3, 4, v9
    s_lshl_b32 s12, s5, 7
    s_lshl_b32 s13, s5, 19
    s_lshl_b32 s15, s4, 8
    s_add_u32 s13, s13, s15
    s_movk_i32 s16, 0x2000
    s_mov_b32 s62, {1<<22}
    s_mov_b32 s63, 0x20000
    s_mov_b32 s66, 2048
    s_mov_b32 s67, 0x20000
    s_waitcnt lgkmcnt(0)
    s_mov_b64 s[60:61], s[38:39]
    s_mov_b64 s[64:65], s[32:33]
    buffer_load_dwordx4 v[8:11], v24, s[64:67], s12 offen
    buffer_load_dwordx4 v[12:15], v24, s[64:67], s12 offen offset:16''')
    for n in range(16):
        a(f'buffer_load_dwordx4 v[{WQ+4*n}:{WQ+4*n+3}], v1, s[60:63], s13 offen {nt}')
        if n < 15: a('s_add_u32 s13, s13, s16')
    a('s_load_dword s6, s[56:57], 0     ; epoch')
    a('s_barrier')
    srd(68, 56, WS_SIZE)
    selectors(SEL, 24)
    a(f'''v_lshlrev_b32 v5, 4, v0
    s_lshl_b32 s15, s2, 10
    s_add_u32 s15, s15, {WS_QP}
    v_and_b32 v160, 7, v3
    s_cmp_eq_u32 s4, 21
    s_cselect_b32 s14, 3, 7
    v_and_b32 v160, s14, v160
    v_lshlrev_b32 v160, 4, v160
    s_mov_b32 s14, {16*2752}
    v_mad_u32_u24 v160, v2, s14, v160
    s_mul_i32 s14, s5, {64*2752}
    s_lshl_b32 s16, s4, 7
    s_add_u32 s14, s14, s16
    v_add_u32 v160, s14, v160
    v_mov_b32 v161, 0
    v_cmp_gt_u32 vcc, 8, v3
    v_mov_b32 v158, s46
    v_mov_b32 v159, s47
    v_mov_b32 v162, s44
    v_mov_b32 v163, s45
    v_cndmask_b32 v158, v158, v162, vcc
    v_cndmask_b32 v159, v159, v163, vcc
    v_lshl_add_u64 v[158:159], v[160:161], 0, v[158:159]
    s_mov_b32 s16, {2*2752}
    s_mov_b32 s17, 0
    s_cmp_lt_u32 s4, 22
    s_cselect_b64 vcc, -1, 0
    v_mov_b32 v160, 1
    s_waitcnt lgkmcnt(0)
    v_mov_b32 v161, s6
    ds_write_b64 v4, v[160:161] offset:{L_EP}''')
    tag_compute()
    a(f'''v_mov_b32 v{VT}, s7
    v_lshrrev_b32 v{VT+1}, 8, v{VT}
    v_lshrrev_b32 v{VT+2}, 16, v{VT}
    v_lshrrev_b32 v{VT+3}, 24, v{VT}
    v_mov_b32 v{VFF}, 0xff
    s_waitcnt vmcnt(16) lgkmcnt(0)''')
    gemv(16, XR, WQ, AQ, SEL, AT, [15 - k for k in range(16)])
    a(f'''v_mov_b32 v{VC}, 0x0c0c0400
    v_mov_b32 v{VC+1}, 0x04000c0c
    s_lshl_b32 s14, s4, 13
    s_lshr_b32 s18, s5, 2
    s_lshl_b32 s18, s18, 9
    s_add_u32 s14, s14, s18
    s_add_u32 s14, s14, {WS_QP}
    s_add_u32 s18, s56, s14''')
    tag_apply(AQ, VT, VFF)
    a(f'buffer_store_dwordx4 v[{AQ}:{AQ+3}], v5, s[68:71], s15 offen sc1')
    stamp(1)
    a('s_addc_u32 s19, s57, 0')
    a('s_cbranch_vccz L_A_nogu1')
    for kk in range(16):
        off = '' if kk % 2 == 0 else ' offset:2752'
        a(f'global_load_dwordx4 v[{GU+4*kk}:{GU+4*kk+3}], v[158:159], off{off} {nt}')
        if kk % 2 == 1 and kk < 15:
            a('v_lshl_add_u64 v[158:159], v[158:159], 0, s[16:17]')
    a('L_A_nogu1:')
    a(f'''s_lshr_b32 s9, s7, 24
    s_mov_b32 s11, {LIM_G}
    v_lshrrev_b32 v39, 5, v0
    v_and_b32 v37, 31, v0
    v_lshlrev_b32 v36, 4, v37
    v_lshl_add_u32 v36, v39, 10, v36
    s_add_u32 s16, s14, 4096
    v_lshlrev_b32 v37, 4, v3
    v_and_b32 v38, 1, v2
    v_lshl_add_u32 v37, v38, 3, v37
    v_lshl_add_u32 v37, v39, 1, v37
    v_and_b32 v38, 1, v0
    v_lshlrev_b32 v38, 7, v38
    v_bfe_u32 v39, v0, 2, 1
    v_lshl_add_u32 v38, v39, 6, v38
    v_bfe_u32 v39, v0, 1, 1
    v_lshl_add_u32 v38, v39, 5, v38
    v_lshrrev_b32 v39, 3, v0
    v_lshl_add_u32 v38, v39, 2, v38
    v_mov_b32 v39, 1
    s_lshl_b32 s15, s2, 10
    s_add_u32 s15, s15, {WS_GU}
    s_lshl_b32 s20, s5, 10
    s_add_u32 s20, s20, 508''')
    a('L_A_s0:')
    a('''s_load_dword s21, s[18:19], s20 glc
    s_sub_u32 s11, s11, 1
    s_cbranch_scc1 L_A_spd
    s_waitcnt lgkmcnt(0)
    s_xor_b32 s21, s21, s9
    s_and_b32 s21, s21, 0xff
    s_cbranch_scc1 L_A_s0''')
    a('L_A_sp:')
    for p in range(8):
        a(f's_load_dword s{20+p}, s[18:19], {p*1024+508} glc')
    a('''s_sub_u32 s11, s11, 1
    s_cbranch_scc1 L_A_spd
    s_waitcnt lgkmcnt(0)''')
    for p in range(8):
        a(f's_xor_b32 s{20+p}, s{20+p}, s9')
    for p in range(1, 8):
        a(f's_or_b32 s20, s20, s{20+p}')
    a('''s_and_b32 s20, s20, 0xff
    s_cbranch_scc1 L_A_sp''')
    a('L_A_spd:')
    stamp(2)
    QG = 40
    qloads = [f'buffer_load_dwordx4 v[{QG+4*k}:{QG+4*k+3}], v36, s[68:71], s{14 if k < 2 else 16} offen offset:{(k&1)*2048} sc1' for k in range(4)]
    for l in qloads: a(l)
    a('s_cbranch_vccz L_A_q')
    gemv(16, XR, GU, 32, SEL, AT, [4 + 15 - k for k in range(16)])
    a('L_A_q:')
    a('s_waitcnt vmcnt(0)')
    a('s_mov_b64 s[28:29], vcc')
    gather_check(qloads, [QG + 4 * k for k in range(4)], VC, 56)
    strip(range(QG, QG + 16))
    for k in range(1, 4):
        for r in range(4):
            a(f'v_add_f32 v{QG+r}, v{QG+r}, v{QG+4*k+r}')
    halves(QG)
    a(f'''s_waitcnt lgkmcnt(0)
    ds_write_b16 v37, v{QG} offset:{L_Q}
    ds_write_b16_d16_hi v37, v{QG} offset:{L_Q+4}
    ds_write_b32 v4, v39 offset:{L_QFLAG}
    s_cmp_eq_u64 s[28:29], 0
    s_cbranch_scc1 L_A_nogu3''')
    for r in range(4):
        a(f'ds_bpermute_b32 v{40+r}, v38, v{32+r}')
    a('s_waitcnt lgkmcnt(0)')
    tag_apply(40, VT, VFF)
    a('buffer_store_dwordx4 v[40:43], v5, s[68:71], s15 offen sc1')
    a('L_A_nogu3:')
    stamp(3)
    lds_poll(L_SCNT, 4, 36)
    stamp(4)
    a(f'''ds_read_b128 v[44:47], v4 offset:{L_ST}
    ds_read_b128 v[56:59], v4 offset:{L_ST+16}
    s_mov_b32 s16, {LOG2E}
    v_lshlrev_b32 v38, 4, v0
    s_lshl_b32 s15, s2, 10
    s_add_u32 s15, s15, {WS_OP}
    s_waitcnt lgkmcnt(0)
    v_max3_f32 v48, v44, v46, v56
    v_max_f32 v48, v48, v58
    v_sub_f32 v52, v44, v48
    v_sub_f32 v53, v46, v48
    v_sub_f32 v54, v56, v48
    v_sub_f32 v55, v58, v48
    v_mul_f32 v52, s16, v52
    v_mul_f32 v53, s16, v53
    v_mul_f32 v54, s16, v54
    v_mul_f32 v55, s16, v55
    v_exp_f32 v52, v52
    v_exp_f32 v53, v53
    v_exp_f32 v54, v54
    v_exp_f32 v55, v55
    s_nop 0
    v_mul_f32 v49, v52, v45
    v_fma_f32 v49, v53, v47, v49
    v_fma_f32 v49, v54, v57, v49
    v_fma_f32 v49, v55, v59, v49    ; L
    v_mov_b32 v50, 0
    v_mov_b32 v51, 0''')
    tag_apply(48, VT, VFF)
    if sstat:
        a(f'''s_add_u32 s18, s56, s15
        s_addc_u32 s19, s57, 0
        v_readfirstlane_b32 s20, v48
        v_readfirstlane_b32 s21, v49
        v_readfirstlane_b32 s22, v50
        v_readfirstlane_b32 s23, v51
        s_mov_b32 exec_hi, 0
        s_nop 3
        s_atomic_swap_x2 s[20:21], s[18:19], 512
        s_atomic_swap_x2 s[22:23], s[18:19], 520
        s_waitcnt lgkmcnt(0)''')
    else:
        a('''s_mov_b64 exec, 1
        buffer_store_dwordx4 v[48:51], v4, s[68:71], s15 offen offset:512 sc1
        s_mov_b32 exec_lo, -1''')
    stamp(5)
    if stamps: a('s_waitcnt lgkmcnt(0)')
    oreads = [f'ds_read_b128 v[{60+4*w}:{63+4*w}], v38 offset:{L_O+512*w}' for w in range(4)]
    lds_poll(L_OCNT, 4, 36, extra=oreads)
    a('L_A_comb:')
    for w in range(4):
        a(f's_waitcnt lgkmcnt({3-w})')
        for r in range(4):
            if w == 0: a(f'v_mul_f32 v{60+r}, v52, v{60+r}')
            else: a(f'v_fma_f32 v{60+r}, v{52+w}, v{60+4*w+r}, v{60+r}')
    tag_apply(60, VT, VFF)
    a('s_cbranch_execz L_B_h')
    a('buffer_store_dwordx4 v[60:63], v38, s[68:71], s15 offen sc1')
    stamp(6)
    finish(7)

    KR, VR, SC = 32, 96, 12
    QF, MK, ACC = 28, 8, 160
    a('L_S:')
    a(f'''s_lshr_b32 s12, s5, 2
    s_lshl_b32 s12, s12, 5
    s_add_u32 s12, s12, s4
    s_lshl_b32 s12, s12, 4
    s_and_b32 s13, s5, 3
    s_add_u32 s12, s12, s13
    s_lshl_b32 s12, s12, 6
    s_add_u32 s12, s12, s3
    s_lshl_b32 s12, s12, 10
    s_add_u32 s12, s12, {786432 - 1024}
    s_sub_u32 s14, s3, 1                 ; w
    v_lshlrev_b32 v1, 4, v0
    s_mov_b32 s62, {0x10000 - 3072}
    s_mov_b32 s63, 0x20000
    s_mov_b32 s66, {0x10000 - 3072}
    s_mov_b32 s67, 0x20000
    s_mov_b64 vcc, 0
    s_lshl_b32 s13, s2, 12
    s_and_b32 s13, s13, 0xffff
    s_waitcnt lgkmcnt(0)
    s_add_u32 s60, s34, s12
    s_addc_u32 s61, s35, 0
    s_add_u32 s64, s36, s12
    s_addc_u32 s65, s37, 0
    s_mov_b32 s38, s13
    s_barrier''')
    for n in range(32):
        if n >= win and n < n1:
            L = a.label('Lw')
            a(f'''s_cbranch_vccnz {L}
            ds_read_b32 v5, v4 offset:{L_QFLAG}
            s_waitcnt vmcnt({win-1}) lgkmcnt(0)
            v_cmp_ne_u32 vcc, 0, v5''')
            a(f'{L}:')
        sr, R, i = (60, KR, n) if n < 16 else (64, VR, n - 16)
        a(f'buffer_load_dwordx4 v[{R+4*i}:{R+4*i+3}], v1, s[{sr}:{sr+3}], s{38+i} offen {nt}')
        if n < 15:
            a(f's_add_u32 s{39+i}, s{38+i}, 4096')
            a(f's_and_b32 s{39+i}, s{39+i}, 0xffff')
    a(f'''v_and_b32 v5, 1, v0
    v_cmp_eq_u32 vcc, 1, v5
    v_mov_b32 v6, 0xffff
    v_mov_b32 v7, 0xffff0000
    v_cndmask_b32 v6, v6, v7, vcc
    v_lshrrev_b32 v5, 1, v3''')
    for r in range(4):
        a(f'''v_cmp_eq_u32 vcc, {r}, v5
        s_nop 1
        v_cndmask_b32 v{MK+r}, 0, v6, vcc''')
    stamp(1)
    lds_poll(L_QFLAG, 1, 5)
    a('s_waitcnt vmcnt(16)')
    a('L_S_qk:')
    a(f'''v_lshlrev_b32 v5, 4, v3
    ds_read_b128 v[{QF}:{QF+3}], v5 offset:{L_Q}
    s_mov_b32 s15, {SCALE}
    s_mov_b32 s16, {LOG2E}
    s_mov_b32 s17, 0xffff0000
    s_waitcnt lgkmcnt(0)''')
    stamp(2)
    for r in range(4):
        for i in range(16):
            c = '0' if r == 0 else f'v{SC+i}'
            a(f'v_dot2_f32_bf16 v{SC+i}, v{KR+4*i+r}, v{QF+r}, {c}')
    T, U = KR, KR + 8
    for i in range(8):
        a(f'v_add_f32_dpp v{T+i}, v{SC+i}, v{SC+i} row_ror:8 row_mask:0xf bank_mask:0x3')
    for i in range(8):
        a(f'v_add_f32_dpp v{T+i}, v{SC+8+i}, v{SC+8+i} row_ror:8 row_mask:0xf bank_mask:0xc')
    for i in range(4):
        a(f'v_add_f32_dpp v{U+i}, v{T+i}, v{T+i} row_ror:12 row_mask:0xf bank_mask:0x5')
    for i in range(4):
        a(f'v_add_f32_dpp v{U+i}, v{T+4+i}, v{T+4+i} row_ror:4 row_mask:0xf bank_mask:0xa')
    a('v_and_b32 v5, 3, v0')
    for qp in ('[1,0,3,2]', '[2,3,0,1]'):
        for i in range(4):
            a(f'v_add_f32_dpp v{U+i}, v{U+i}, v{U+i} quad_perm:{qp} {DPPALL}')
    a(f'''v_cmp_eq_u32 vcc, 1, v5
    v_cmp_eq_u32 s[20:21], 2, v5
    v_cmp_eq_u32 s[22:23], 3, v5
    s_nop 0
    v_cndmask_b32 v{SC}, v{U}, v{U+1}, vcc
    v_cndmask_b32 v{SC}, v{SC}, v{U+2}, s[20:21]
    v_cndmask_b32 v{SC}, v{SC}, v{U+3}, s[22:23]
    v_cvt_pk_bf16_f32 v{SC}, v{SC}, v{SC}
    v_and_b32 v{SC}, s17, v{SC}
    v_mul_f32 v{SC}, s15, v{SC}
    v_cvt_pk_bf16_f32 v{SC}, v{SC}, v{SC}
    v_and_b32 v{SC}, s17, v{SC}
    s_nop 1
    v_max_f32_dpp v5, v{SC}, v{SC} row_ror:8 {DPPALL}''')
    for rot in (4, 2, 1):
        a('s_nop 1')
        a(f'v_max_f32_dpp v5, v5, v5 row_ror:{rot} {DPPALL}')
    a(f'''v_mov_b32 v6, v5
    s_nop 1
    v_permlane32_swap_b32 v5, v6
    s_nop 1
    v_max_f32 v5, v5, v6
    v_mov_b32 v6, v5
    s_nop 1
    v_permlane16_swap_b32 v5, v6
    s_nop 1
    v_max_f32 v5, v5, v6
    v_sub_f32 v{SC}, v{SC}, v5
    v_mul_f32 v{SC}, s16, v{SC}
    v_exp_f32 v{SC}, v{SC}
    s_nop 0
    v_cvt_pk_bf16_f32 v{SC+1}, v{SC}, v{SC}
    s_nop 0
    v_add_f32_dpp v7, v{SC}, v{SC} row_ror:8 {DPPALL}''')
    rots = [4, 2, 1]
    for i in range(16):
        for r in range(4):
            a(f'v_and_b32_dpp v{KR+4*i+r}, v{SC+1}, v{MK+r} row_newbcast:{i} {DPPALL}')
        if i < 3: a(f'v_add_f32_dpp v7, v7, v7 row_ror:{rots[i]} {DPPALL}')
        if i == 3: a('v_mov_b32 v6, v7')
        if i == 4: a('v_permlane32_swap_b32 v6, v7')
        if i == 5:
            a('v_add_f32 v7, v6, v7')
            a('v_mov_b32 v6, v7')
        if i == 6: a('v_permlane16_swap_b32 v6, v7')
        if i == 7:
            a('v_add_f32 v7, v6, v7')
            a('v_mov_b32 v6, v5')
            a('s_lshl_b32 s13, s14, 3')
            a(f'v_mov_b32 v{SC+2}, s13')
            a(f'v_mov_b32 v{SC+3}, 1')
        if i == 8:
            a(f'''s_and_b64 exec, s[58:59], 1
            ds_write_b64 v{SC+2}, v[6:7] offset:{L_ST}
            ds_add_u32 v4, v{SC+3} offset:{L_SCNT}
            s_mov_b64 exec, s[58:59]''')
    a(f'''v_lshlrev_b32 v6, 5, v3
    v_lshl_add_u32 v6, v2, 4, v6
    s_lshl_b32 s13, s14, 9
    v_add_u32 v6, s13, v6''')
    stamp(3)
    for i in range(16):
        a(f's_waitcnt vmcnt({15-i})')
        c = '0' if i == 0 else f'v[{ACC}:{ACC+3}]'
        a(f'v_mfma_f32_16x16x32_bf16 v[{ACC}:{ACC+3}], v[{KR+4*i}:{KR+4*i+3}], v[{VR+4*i}:{VR+4*i+3}], {c}')
        if i == vsig:
            a(f'''s_and_b64 exec, s[58:59], 1
            ds_add_u32 v4, v{SC+3} offset:{L_VDONE}
            s_mov_b64 exec, s[58:59]''')
    stamp(4)
    a(f'''s_cbranch_execz L_B_dry4
    s_mov_b32 exec_hi, 0
    s_nop 5
    ds_write_b128 v6, v[{ACC}:{ACC+3}] offset:{L_O}
    s_mov_b64 exec, 1
    ds_add_u32 v4, v{SC+3} offset:{L_OCNT}''')
    finish(5)

    SEL, AT, WD, WO = 16, 24, 32, 56
    OG, HS = 120, 132
    ACA, ACF, SG = 136, 140, 136
    VT, VFF, VC = 144, 148, 149
    VG, VOG = 151, 152
    T0 = 153
    PB, SCL = T0 + 12, T0 + 13
    a('L_B:')
    a(f'''v_lshlrev_b32 v1, 4, v0
    s_getpc_b64 s[20:21]
    L_pc:
    s_sub_u32 s20, s20, L_pc-{KN}
    s_subb_u32 s21, s21, 0
    s_and_b32 s22, s4, 15
    s_lshl_b32 s22, s22, 10
    v_add_u32 v5, s22, v1
    v_min_u32 v5, L_exit-{KN}-16, v5
    v_and_b32 v5, 0xfffffff0, v5
    global_load_dwordx4 v[44:47], v5, s[20:21]
    s_barrier
    s_waitcnt lgkmcnt(0)
    s_lshr_b32 s13, s2, 2
    s_lshl_b32 s13, s13, 7
    s_add_u32 s13, s13, {WS_C2}
    s_add_u32 s100, s56, s13
    s_addc_u32 s101, s57, 0                ; s[100:101] = &C2[r]
    s_load_dword s99, s[100:101], 0''')
    srd(60, 32, 2048)
    srd(64, 50, 1024)
    srd(68, 56, WS_SIZE)
    srd(72, 52, 2048)
    a(f'''buffer_load_dwordx4 v[56:59], v1, s[60:63], 0 offen
    buffer_load_dwordx4 v[60:63], v1, s[60:63], 0 offen offset:1024
    buffer_load_dwordx4 v[64:67], v1, s[64:67], 0 offen''')
    selectors(SEL, 24)
    a(f'''v_lshlrev_b32 v8, 10, v0
    v_and_b32 v14, 3, v0
    v_bfe_u32 v10, v0, 3, 1
    v_lshlrev_b32 v9, 2, v10
    v_bfe_u32 v10, v0, 2, 1
    v_add_u32 v9, v9, v10
    v_lshlrev_b32 v{PB}, 2, v9
    v_lshlrev_b32 v9, 10, v9
    v_lshl_add_u32 v9, v2, 6, v9
    v_lshl_add_u32 v9, v14, 4, v9
    s_lshr_b32 s12, s5, 2
    s_lshl_b32 s19, s12, 8
    v_add_u32 v9, s19, v9
    v_bfe_u32 v10, v0, 3, 1
    v_lshlrev_b32 v10, 6, v10
    v_lshl_add_u32 v10, v2, 4, v10
    v_lshrrev_b32 v11, 2, v3
    v_lshl_add_u32 v11, v2, 2, v11
    v_lshlrev_b32 v11, 14, v11
    v_lshl_add_u32 v11, v14, 4, v11
    v_lshlrev_b32 v12, 4, v0
    v_and_b32 v13, 1, v2
    v_lshlrev_b32 v13, 2, v13
    v_lshl_add_u32 v13, v14, 4, v13
    v_lshrrev_b32 v14, 1, v2
    v_lshl_add_u32 v13, v14, 1, v13''')
    dry_enter('L_A_comb')
    a('L_B_dry3:')
    dry_leave()
    lds_poll(L_EP, 1, 7)
    a(f'''ds_read_b32 v7, v4 offset:{L_EP+4}
    s_mov_b32 s17, 0xffff0000
    s_waitcnt lgkmcnt(0)
    v_readfirstlane_b32 s6, v7''')
    tag_compute()
    a(f'''v_mov_b32 v{VT}, s7
    v_lshrrev_b32 v{VT+1}, 8, v{VT}
    v_lshrrev_b32 v{VT+2}, 16, v{VT}
    v_lshrrev_b32 v{VT+3}, 24, v{VT}
    v_mov_b32 v{VFF}, 0xff
    v_mov_b32 v{VC}, 0x0c0c0400
    v_mov_b32 v{VC+1}, 0x04000c0c
    s_waitcnt vmcnt(0)''')
    for d in range(4):
        a(f'v_lshlrev_b32 v{68+2*d}, 16, v{64+d}')
        a(f'v_and_b32 v{69+2*d}, s17, v{64+d}')
    for b in range(2):
        for d in range(4):
            a(f'v_lshlrev_b32 v{76+2*d}, 16, v{56+4*b+d}')
            a(f'v_and_b32 v{77+2*d}, s17, v{56+4*b+d}')
        for e in range(8):
            a(f'v_mul_f32 v{76+e}, v{76+e}, v{68+e}')
        for d in range(4):
            a(f'v_cvt_pk_bf16_f32 v{84+d}, v{76+2*d}, v{77+2*d}')
        for d in range(4):
            a(f'v_lshlrev_b32 v{76+2*d}, 16, v{84+d}')
            a(f'v_and_b32 v{77+2*d}, s17, v{84+d}')
        for stp in (1, 2):
            for e in range(0, 8, 2 * stp):
                a(f'v_add_f32 v{76+e}, v{76+e}, v{76+e+stp}')
        a(f'v_add_f32 v{88+b}, v76, v80')
    a(f'''s_nop 1
    v_permlane32_swap_b32 v88, v89
    s_nop 1
    v_add_f32 v88, v88, v89
    v_mov_b32 v89, v88
    s_nop 1
    v_permlane16_swap_b32 v88, v89
    s_nop 1
    v_add_f32 v88, v88, v89''')
    for rot in (8, 4, 2, 1):
        a('s_nop 1')
        a(f'v_add_f32_dpp v88, v88, v88 row_ror:{rot} {DPPALL}')
    a(f'''v_cvt_pk_bf16_f32 v88, v88, v88
    s_mov_b32 s16, {LOG2E}
    v_and_b32 v88, s17, v88
    v_mul_f32 v88, s16, v88
    v_sub_f32 v88, 0, v88
    v_exp_f32 v88, v88
    s_nop 0
    v_add_f32 v88, 1.0, v88
    v_rcp_f32 v88, v88
    s_nop 0
    v_cvt_pk_bf16_f32 v88, v88, v88
    v_and_b32 v{VG}, s17, v88
    v_sub_f32 v88, 1.0, v{VG}
    v_cvt_pk_bf16_f32 v88, v88, v88
    v_and_b32 v{VOG}, s17, v88
    ds_read_b32 v7, v4 offset:{L_QFLAG}
    s_waitcnt lgkmcnt(0)
    v_readfirstlane_b32 s10, v7
    s_cmp_lg_u32 s10, 0
    s_cbranch_scc1 L_B_dry4
    s_mov_b32 s14, 0''')
    dry_enter('L_S_qk')
    a('L_B_dry4:')
    dry_leave()
    a(f'''s_mov_b32 s16, {LOG2E}
    s_mov_b32 s17, 0xffff0000
    s_and_b32 s13, s5, 3
    s_lshr_b32 s23, s2, 2
    s_mul_i32 s28, s23, 43
    s_lshr_b32 s29, s28, 3
    s_add_u32 s28, s28, 43
    s_lshr_b32 s28, s28, 3
    s_sub_u32 s28, s28, s29
    s_lshl_b32 s15, s29, 12
    s_lshl_b32 s18, s13, 8
    s_add_u32 s15, s15, s18
    s_lshl_b32 s14, s23, 16
    s_add_u32 s14, s14, s18
    s_lshl_b32 s19, s4, 13
    s_add_u32 s19, s19, {WS_OP}
    s_lshl_b32 s20, s23, 6
    s_lshl_b32 s18, s13, 12
    s_add_u32 s20, s20, s18
    s_add_u32 s20, s20, {WS_FP}
    s_lshl_b32 s22, s23, 12
    s_add_u32 s22, s22, {WS_FP}        ; gather: r*4096
    s_and_b32 s21, s23, 3
    s_bfe_u32 s24, s23, 0x10005
    s_lshl_b32 s24, s24, 10
    s_lshl_b32 s21, s21, 8
    s_add_u32 s24, s24, s21
    s_bfe_u32 s21, s23, 0x20002
    s_lshl_b32 s21, s21, 6
    s_add_u32 s24, s24, s21
    s_bfe_u32 s21, s23, 0x10004
    s_lshl_b32 s21, s21, 3
    s_add_u32 s24, s24, s21
    s_xor_b32 s21, s4, s2
    s_and_b32 s21, s21, 3
    s_lshl_b32 s30, s13, 7
    s_add_u32 s30, s30, {WS_C2}''')
    srd(60, 48, 1376 * 1024)
    srd(64, 40, 1 << 22)
    QG = 120
    a(f'''v_lshlrev_b32 v5, 4, v3
    v_lshl_add_u32 v6, v2, 10, v5
    v_lshl_add_u32 v5, v2, 14, v5
    v_bfe_u32 v14, v0, 2, 3        ; unit
    v_add_u32 v15, s29, v14
    v_lshrrev_b32 v1, 4, v15
    v_lshlrev_b32 v1, 13, v1
    v_and_b32 v15, 15, v15
    v_lshl_add_u32 v1, v15, 6, v1
    v_and_b32 v15, 3, v0
    v_lshl_add_u32 v1, v15, 4, v1
    v_lshrrev_b32 v7, 5, v0
    v_lshl_add_u32 v1, v7, 10, v1
    v_and_b32 v15, 1, v0
    v_lshlrev_b32 v15, 6, v15
    v_lshl_add_u32 v15, v7, 4, v15
    v_lshl_add_u32 v15, v14, 1, v15
    s_mov_b32 s97, {WS_GU}
    s_mov_b32 s98, {WS_GU + 4096}
    v_cmp_gt_u32 s[8:9], s28, v14''')
    for r in range(16):
        a(f'v_mov_b32 v{QG+r}, 0')
    stamp(1)
    gloads = [f'buffer_load_dwordx4 v[{QG+4*k}:{QG+4*k+3}], v1, s[68:71], s{97 if k < 2 else 98} offen offset:{(k&1)*2048} sc1' for k in range(4)]
    sload = [f'buffer_load_dwordx4 v[{SG}:{SG+3}], v8, s[68:71], s19 offen offset:512 sc1']
    a('s_setprio 3')
    lds_poll(L_VDONE, 4, 7)
    stamp(2)
    a('s_mov_b64 exec, s[8:9]')
    for l in gloads: a(l)
    a('s_mov_b64 exec, 0xff')
    for l in sload: a(l)
    a('s_mov_b64 exec, -1')
    for k in range(6):
        a(f's_add_u32 s18, s15, {k*4096}')
        a(f'buffer_load_dwordx4 v[{WD+4*k}:{WD+4*k+3}], v6, s[60:63], s18 offen {nt}')
    for k in range(16):
        if k % 4 == 0: a(f's_add_u32 s18, s14, {k*1024}')
        a(f'buffer_load_dwordx4 v[{WO+4*k}:{WO+4*k+3}], v5, s[64:67], s18 offen offset:{(k%4)*1024} {nt}')
    a('s_waitcnt vmcnt(23)')
    a('s_mov_b64 exec, s[8:9]')
    a('L_B_h:')
    gather_check(gloads, [QG + 4 * k for k in range(4)], VC, T0)
    strip(range(QG, QG + 16))
    for k in range(1, 4):
        for r in range(4):
            a(f'v_add_f32 v{QG+r}, v{QG+r}, v{QG+4*k+r}')
    halves(QG)
    a(f'''v_lshlrev_b32 v{QG+4}, 16, v{QG}
    v_and_b32 v{QG+5}, s17, v{QG}
    s_nop 1
    v_mul_f32_dpp v{QG+6}, v{QG+4}, v{QG+4} quad_perm:[2,3,0,1] {DPPALL}
    v_mul_f32_dpp v{QG+7}, v{QG+5}, v{QG+5} quad_perm:[2,3,0,1] {DPPALL}
    v_cvt_pk_bf16_f32 v{QG}, v{QG+6}, v{QG+7}
    ds_write_b16 v15, v{QG} offset:{L_H}
    ds_write_b16_d16_hi v15, v{QG} offset:{L_H+32}
    ds_read_b128 v[{HS}:{HS+3}], v10 offset:{L_H}
    v_mov_b32 v14, 1
    s_waitcnt lgkmcnt(0)
    v_lshlrev_b32 v15, 9, v0
    s_waitcnt vmcnt(22)
    s_and_b64 exec, s[58:59], 0xff''')
    gather_check(sload, [SG], VC, T0)
    oloads = [f'buffer_load_dwordx4 v[{OG}:{OG+3}], v9, s[68:71], s19 offen sc1',
              f'buffer_load_dwordx4 v[{OG+4}:{OG+7}], v9, s[68:71], s19 offen offset:2048 sc1']
    mem(oloads)
    m, l = SG, SG + 1
    strip([l])
    a(f'''v_and_b32 v{m}, s17, v{m}
    s_nop 1
    v_max_f32_dpp v{T0}, v{m}, v{m} quad_perm:[1,0,3,2] {DPPALL}
    s_nop 1
    v_max_f32_dpp v{T0}, v{T0}, v{T0} quad_perm:[2,3,0,1] {DPPALL}
    v_sub_f32 v{T0}, v{m}, v{T0}
    v_mul_f32 v{T0}, s16, v{T0}
    v_exp_f32 v{T0}, v{T0}
    s_nop 0
    v_mul_f32 v{T0+1}, v{T0}, v{l}
    s_nop 1
    v_add_f32_dpp v{T0+1}, v{T0+1}, v{T0+1} quad_perm:[1,0,3,2] {DPPALL}
    s_nop 1
    v_add_f32_dpp v{T0+1}, v{T0+1}, v{T0+1} quad_perm:[2,3,0,1] {DPPALL}
    v_rcp_f32 v{T0+1}, v{T0+1}
    s_nop 0
    v_mul_f32 v{T0}, v{T0}, v{T0+1}
    ds_bpermute_b32 v{SCL}, v{PB}, v{T0}
    ds_bpermute_b32 v{SCL+1}, v{PB}, v{T0} offset:8''')
    stamp(3)
    gemv(6, HS, WD, ACF, SEL, AT, [18 + 5 - k for k in range(6)])
    a(f's_mov_b32 s11, {LIM_G}')
    a('s_waitcnt lgkmcnt(0)')
    a('s_nop 5')
    for r in range(4):
        a(f'v_mul_f32 v{ACF+r}, v{VOG}, v{ACF+r}')
    a('s_branch L_B_oc')
    a('L_B_ol:')
    for l in oloads: a(l)
    a('L_B_oc:')
    a('s_waitcnt vmcnt(0)')
    stamp(4)
    OS = 32
    for l in tag_check_lines([OG, OG + 4], VC, T0): a(l)
    strip(range(OG, OG + 8))
    for e in range(4): a(f'v_mul_f32 v{OS+e}, v{SCL}, v{OG+e}')
    for e in range(4): a(f'v_fma_f32 v{OS+e}, v{SCL+1}, v{OG+4+e}, v{OS+e}')
    a('''s_sub_u32 s11, s11, 1
    s_cbranch_scc1 L_B_od
    s_and_b64 exec, exec, vcc
    s_cbranch_scc1 L_B_ol''')
    a('L_B_od:')
    a('s_mov_b64 exec, s[58:59]')
    stamp(5)
    for e in range(4):
        a(f'v_add_f32_dpp v{OS+4+e}, v{OS+e}, v{OS+e} row_ror:12 row_mask:0xf bank_mask:0x5')
    for e in range(4):
        a(f'v_add_f32_dpp v{OS+4+e}, v{OS+e}, v{OS+e} row_ror:4 row_mask:0xf bank_mask:0xa')
    a(f'v_cvt_pk_bf16_f32 v{OS}, v{OS+4}, v{OS+5}')
    a(f'v_cvt_pk_bf16_f32 v{OS+1}, v{OS+6}, v{OS+7}')
    mem(['s_mov_b64 exec, 0xffff', 'buffer_atomic_add v14, v15, s[68:71], s30 offen', 's_mov_b64 exec, -1'])
    X = T0 + 2
    a('s_cmp_lg_u32 s21, 0')
    for u in range(4):
        for d in range(2):
            a(f'v_mov_b32_dpp v{X+2*u+d}, v{OS+d} quad_perm:[{u},{u},{u},{u}] {DPPALL}')
    gemv(16, X, WO, ACA, SEL, AT, [None] * 16)
    a(f's_mov_b32 s11, {LIM_H}')
    a('s_nop 6')
    for r in range(4):
        a(f'v_fma_f32 v{ACA+r}, v{VG}, v{ACA+r}, v{ACF+r}')
    tag_apply(ACA, VT, VFF)
    FG, FS = 32, 48
    floads = [f'buffer_load_dwordx4 v[{FG+4*k}:{FG+4*k+3}], v12, s[68:71], s22 offen offset:{1024*k} sc1' for k in range(4)]
    a('s_cbranch_execz L_B_fc')
    a(f'buffer_store_dwordx4 v[{ACA}:{ACA+3}], v11, s[68:71], s20 offen sc1')
    if stamps:
        a('s_memrealtime s[92:93]'); a('s_memrealtime s[94:95]')
    a('s_cbranch_scc1 L_B_end')
    a('L_B_hl:')
    a('''s_load_dword s10, s[100:101], 0 glc
    s_sub_u32 s11, s11, 1
    s_cbranch_scc1 L_B_hd
    s_waitcnt lgkmcnt(0)
    s_sub_u32 s10, s10, s99
    s_cmp_lt_u32 s10, 64
    s_cbranch_scc1 L_B_hl''')
    a('L_B_hd:')
    a(f's_mov_b32 s11, {LIM_G}')
    a('L_B_fl:')
    for l in floads: a(l)
    a('s_waitcnt vmcnt(0)')
    a('L_B_fc:')
    for l in tag_check_lines([FG + 4 * k for k in range(4)], VC, T0): a(l)
    strip(range(FG, FG + 16))
    for r in range(4): a(f'v_add_f32 v{FS+r}, v{FG+r}, v{FG+4+r}')
    for r in range(4): a(f'v_add_f32 v{FS+4+r}, v{FG+8+r}, v{FG+12+r}')
    for r in range(4): a(f'v_add_f32 v{FS+r}, v{FS+r}, v{FS+4+r}')
    a('''s_sub_u32 s11, s11, 1
    s_cbranch_scc1 L_B_fd
    s_and_b64 exec, exec, vcc
    s_cbranch_scc1 L_B_fl''')
    a('L_B_fd:')
    a(f'''s_mov_b64 exec, s[58:59]
    v_permlane32_swap_b32 v{FS}, v{FS+1}
    v_permlane32_swap_b32 v{FS+2}, v{FS+3}
    s_nop 1
    v_add_f32 v{FS}, v{FS}, v{FS+1}
    v_add_f32 v{FS+2}, v{FS+2}, v{FS+3}
    s_nop 1
    v_permlane16_swap_b32 v{FS}, v{FS+2}
    s_nop 1
    v_add_f32 v{FS}, v{FS}, v{FS+2}''')
    for rot in (8, 4):
        a('s_nop 1')
        a(f'v_add_f32_dpp v{FS}, v{FS}, v{FS} row_ror:{rot} {DPPALL}')
    a(f'''v_cvt_pk_bf16_f32 v{FS}, v{FS}, v{FS}
    s_cbranch_execz L_B_dry3
    s_mov_b32 exec_lo, 0x000f000f
    s_mov_b32 exec_hi, 0x000f000f
    buffer_store_short v{FS}, v13, s[72:75], s24 offen sc1
    s_cmp_lg_u32 s2, 0
    s_cbranch_scc1 L_B_st
    s_add_u32 s6, s6, 1
    v_mov_b32 v5, s6
    s_mov_b64 exec, 1
    buffer_store_dword v5, v4, s[68:71], 0 offen sc1''')
    a('L_B_st:')
    stamp(7)
    a('L_B_end:')
    finish(8)
    for t in tail:
        for l in t: a(l)
    a('L_exit:')
    txt = kernel_file([(KN, 256, 384, LDS_BYTES)], [(KN, a.text(), 168, 102, 168)])
    txt = txt.replace('.amdgcn_target', DOC + '.amdgcn_target', 1)
    open(fname, 'w').write(txt)

if __name__ == '__main__':
    gen('f5.s', untag=False); gen('f8.s'); gen('f8_st.s', stamps=True)
```
